```python
import torch

def _softmax(x, axis=-1):
    return torch.softmax(x, dim=axis)
def _gelu(x):
    return torch.nn.functional.gelu(x, approximate="tanh")
def _silu(x):
    return torch.nn.functional.silu(x)
def _sigmoid(x):
    return torch.sigmoid(x)
def _layernorm(x, axis=-1, eps=1e-5):
    m = x.mean(dim=axis, keepdim=True)
    v = x.var(dim=axis, keepdim=True, unbiased=False)
    return (x - m) / torch.sqrt(v + eps)
def _scatter_add(tgt, idx, src, axis=0):
    return tgt.clone().index_add_(axis, idx, src)
def _segment_sum(src, seg, n):
    out = torch.zeros((n,) + src.shape[1:], dtype=src.dtype)
    return out.index_add_(0, seg, src)
def _pad(x, pw):
    flat = tuple(v for pair in reversed(pw) for v in pair)
    return torch.nn.functional.pad(x, flat)

kernel_name = 'gated_mix__ssm_conv_h3__ssm_conv_s4d__prompt'

def setup_inputs():

    _w = (lambda a: (lambda t: t.to(torch.bfloat16) if t.is_floating_point() else t)(torch.as_tensor(a)))
    def _A_setup():
        B, S, D = 1, 2048, 576
        ks = 4
        return {
            "q": _w((lambda *s: torch.randn(*s, dtype=torch.bfloat16) * 0.05)(B, S, D)),
            "k": _w((lambda *s: torch.randn(*s, dtype=torch.bfloat16) * 0.8)(B, S, D)),
            "v": _w((lambda *s: torch.randn(*s, dtype=torch.bfloat16) * 0.8)(B, S, D)),
            "shift_k": _w((lambda *s: torch.randn(*s, dtype=torch.bfloat16) * 0.8)(D, ks) * 0.5),
            "ssm_k": _w((lambda *s: torch.randn(*s, dtype=torch.bfloat16) * 0.8)(D, S) * (1.0 / S ** 0.5)),
            "ssm_D": _w((lambda *s: torch.randn(*s, dtype=torch.bfloat16) * 0.8)(D)),
        }
    _A_in = _A_setup()

    def _B_setup():
        Bsz, L, D, N = 1, 2048, 576, 128
        return {
            "u": _w((lambda *s: torch.randn(*s, dtype=torch.bfloat16) * 0.05)(Bsz, L, D)),
            "log_A_real": _w((lambda *s: torch.randn(*s, dtype=torch.bfloat16) * 3.2)(D, N) * 0.5),
            "A_imag": _w((lambda *s: torch.randn(*s, dtype=torch.bfloat16) * 0.2)(D, N) * 3.14),
            "C_real": _w((lambda *s: torch.randn(*s, dtype=torch.bfloat16) * 3.2)(D, N) / N ** 0.5),
            "C_imag": _w((lambda *s: torch.randn(*s, dtype=torch.bfloat16) * 3.2)(D, N) / N ** 0.5),
            "log_dt": _w((lambda *s: torch.randn(*s, dtype=torch.bfloat16) * 0.2)(D) * 0.5 - 4.0),
            "D_skip": _w((lambda *s: torch.randn(*s, dtype=torch.bfloat16) * 0.4)(D)),
        }
    _B_in = _B_setup()

    return {
        "A_q": _A_in["q"],
        "A_k": _A_in["k"],
        "A_v": _A_in["v"],
        "A_shift_k": _A_in["shift_k"],
        "A_ssm_k": _A_in["ssm_k"],
        "A_ssm_D": _A_in["ssm_D"],
        "B_u": _B_in["u"],
        "B_log_A_real": _B_in["log_A_real"],
        "B_A_imag": _B_in["A_imag"],
        "B_C_real": _B_in["C_real"],
        "B_C_imag": _B_in["C_imag"],
        "B_log_dt": _B_in["log_dt"],
        "B_D_skip": _B_in["D_skip"],
        "gate_w": _w((lambda *s: torch.randn(*s, dtype=torch.bfloat16) * 0.05)(576) * 16.0),
    }

def reference(A_q, A_k, A_v, A_shift_k, A_ssm_k, A_ssm_D, B_u, B_log_A_real, B_A_imag, B_C_real, B_C_imag, B_log_dt, B_D_skip, gate_w):
    def _A_ref(q, k, v, shift_k, ssm_k, ssm_D):
        B, S, D = q.shape
        ks = shift_k.shape[-1]
        k_pad = _pad(k, ((0, 0), (ks - 1, 0), (0, 0)))
        k_shift = torch.zeros_like(k)
        for t in range(ks):
            k_shift = k_shift + k_pad[:, t:t + S, :] * shift_k[:, ks - 1 - t][None, None, :]
        kv = k_shift * v
        L = 2 * S
        kv_pad = _pad(kv, ((0, 0), (0, S), (0, 0)))
        kf_pad = _pad(ssm_k, ((0, 0), (0, S)))
        kv_f = (lambda x, axes=(-2,-1): torch.fft.rfft2(x.float(), dim=axes))(kv_pad[:, None, :, :], axes=(1, 2))
        kf_f = (lambda x, axes=(-2,-1): torch.fft.rfft2(x.float(), dim=axes))(kf_pad[:, None, :], axes=(1, 2))
        kf_f = (lambda x, *d: x.permute(*d))(kf_f, 1, 2, 0)
        y_f = kv_f * kf_f[None, :, :, :]
        y = (lambda x, s, axes=(-2,-1): torch.fft.irfft2(x, s=s, dim=axes).to(torch.bfloat16))(y_f, (1, L), axes=(1, 2))[:, 0, :S, :]
        y = y + kv * ssm_D[None, None, :]
        return q * y

    def _B_ref(u, log_A_real, A_imag, C_real, C_imag, log_dt, D_skip):
        L = u.shape[1]
        dt = torch.exp(log_dt)
        A = -torch.exp(log_A_real) + 1j * A_imag
        C = (C_real + 1j * C_imag) * dt[:, None]
        pos = (lambda x, dt: x.to(dt))(torch.arange(L), log_dt.dtype)
        P = torch.exp((A * dt[:, None])[:, :, None] * pos[None, None, :])
        K = 2.0 * torch.einsum("dn,dnl->dl", C, P).real
        L2 = 2 * L
        u_t = (lambda x, *d: x.permute(*d))(u, 0, 2, 1)
        Kf = (lambda x, *a, **k: torch.fft.rfft(x.float(), *a, **k))(K, L2)
        Uf = (lambda x, *a, **k: torch.fft.rfft(x.float(), *a, **k))(u_t, L2)
        y = (lambda x, *a, **k: torch.fft.irfft(x, *a, **k).to(torch.bfloat16))(Uf * Kf[None, :, :], L2)[:, :, :L]
        y = (lambda x, *d: x.permute(*d))(y, 0, 2, 1)
        return y + u * D_skip[None, None, :]

    x = A_q
    g = _sigmoid((x * gate_w).sum(-1, keepdims=True))
    a = _A_ref(x, A_k, A_v, A_shift_k, A_ssm_k, A_ssm_D)
    b = _B_ref(x, B_log_A_real, B_A_imag, B_C_real, B_C_imag, B_log_dt, B_D_skip)
    return g * a + (1 - g) * b
```

```python
NAME = "gated_mix__ssm_conv_h3__ssm_conv_s4d__prompt"
OFF = dict(q=0, k=8, v=16, shift=24, ssmk=32, ssmD=40, u=48, lar=56, aim=64, cre=72, cim=80,
           ldt=88, dskip=96, gw=104, out=112, dbg=120, ws=128)

class Asm:
    def __init__(self):
        self.lines = []
    def __call__(self, s=""):
        for l in s.split("\n"):
            self.lines.append(l)
    def text(self):
        return "\n".join(self.lines) + "\n"

def header(launches):
    out = []
    if len(launches) == 1 and launches[0][0] == NAME + "_kernel":
        k, g, b, l = launches[0]
        out.append(f"; @launch grid=({g},1,1) block=({b},1,1) lds={l}")
    else:
        for k, g, b, l in launches:
            out.append(f"; @launch kernel={k} grid=({g},1,1) block=({b},1,1) lds={l}")
    out.append('.amdgcn_target "amdgcn-amd-amdhsa--gfx950"')
    out.append(".text")
    return "\n".join(out) + "\n"

def kstart(name):
    return f".globl {name}\n.p2align 8\n.type {name},@function\n{name}:\n"

def kdesc(name, vgpr, sgpr=96, agpr=0, denorm=True):
    acc = (vgpr + 3) // 4 * 4
    nfv = acc + agpr if agpr else vgpr
    s = f""".amdhsa_kernel {name}
  .amdhsa_next_free_vgpr {nfv}
  .amdhsa_next_free_sgpr {sgpr}
  .amdhsa_accum_offset {acc}
  .amdhsa_group_segment_fixed_size 0
  .amdhsa_kernarg_size 136
  .amdhsa_user_sgpr_count 2
  .amdhsa_user_sgpr_kernarg_segment_ptr 1
  .amdhsa_system_sgpr_workgroup_id_x 1
"""
    if denorm:
        s += "  .amdhsa_float_denorm_mode_32 3\n"
    s += ".end_amdhsa_kernel\n"
    return s

def rodata():
    return '.section .rodata,"a"\n.p2align 6\n'

def srd(a, d, b, nbytes):
    a(f"    s_mov_b32 s{d}, s{b}\n    s_mov_b32 s{d+1}, s{b+1}\n    s_mov_b32 s{d+2}, {nbytes}\n    s_mov_b32 s{d+3}, 0x00020000")

def stamp(a, j, base=80):
    a(f"    s_memrealtime s[{base+2*j}:{base+2*j+1}]")

def stamps_out(a, n, ws, wg="s2", base=80, vt=250, wgoff=0):
    a(f"""    s_waitcnt lgkmcnt(0)
    v_cmp_eq_u32 vcc, 0, v0
    s_and_saveexec_b64 s[76:77], vcc
    s_cbranch_execz Lst_skip_{id(a)}_{len(a.lines)}""")
    lab = f"Lst_skip_{id(a)}_{len(a.lines)-4}"
    a(f"    s_add_u32 s79, {wg}, {wgoff}\n    s_mul_i32 s78, s79, {n*8}\n    s_add_u32 s78, s78, 0x8000000\n    v_mov_b32 v{vt}, s78")
    for j in range(n):
        a(f"    v_mov_b32 v{vt+2}, s{base+2*j}\n    v_mov_b32 v{vt+3}, s{base+2*j+1}\n"
          f"    global_store_dwordx2 v{vt}, v[{vt+2}:{vt+3}], s[{ws}:{ws+1}] offset:{8*j}\n    s_nop 1")
    a(f"{lab}:\n    s_or_b64 exec, exec, s[76:77]")
```

```python
import re

RE_REG = re.compile(r"\b([vsa])\[(\d+):(\d+)\]|\b([vsa])(\d+)\b|\b(vcc|exec|m0|scc)\b")

def regs(tok):
    out = set()
    for m in RE_REG.finditer(tok):
        if m.group(1):
            out |= {(m.group(1), i) for i in range(int(m.group(2)), int(m.group(3)) + 1)}
        elif m.group(4):
            out.add((m.group(4), int(m.group(5))))
        else:
            out.add((m.group(6), 0))
    return out

TRANS = ("v_exp_f32", "v_log_f32", "v_rcp_f32", "v_rsq_f32", "v_sqrt_f32", "v_sin_f32", "v_cos_f32")

class I:
    def __init__(self, line):
        self.line = line
        s = line.split(";")[0].strip()
        self.is_inst = bool(s) and not s.endswith(":") and not s.startswith(".")
        self.label = s[:-1] if s.endswith(":") else None
        self.defs = set(); self.uses = set(); self.op = ""
        self.srcc = set(); self.ab = set(); self.sdata = set()
        if not self.is_inst:
            return
        parts = s.split(None, 1)
        self.op = op = parts[0]
        rest = parts[1] if len(parts) > 1 else ""
        ops = [o.strip() for o in re.split(r",(?![^\[]*\])", rest)]
        self.ops = ops
        self.valu = op.startswith("v_") and not op.startswith("v_mfma")
        self.mfma = op.startswith("v_mfma")
        self.trans = op.startswith(TRANS)
        self.dot = op.startswith("v_dot")
        self.dpp = self.valu and bool(re.search(r"quad_perm|row_sh|row_ro|row_mirror|row_half_mirror|row_bcast|wave_sh|wave_ro|row_newbcast", s))
        self.permlane = op.startswith("v_permlane")
        self.rdlane = op.startswith(("v_readlane", "v_readfirstlane"))
        self.ds = op.startswith("ds_")
        self.vmem = op.startswith(("buffer_", "global_", "flat_"))
        self.salu = op.startswith("s_")
        self.nop = int(ops[0], 0) + 1 if op == "s_nop" else 1
        if self.mfma:
            self.defs = regs(ops[0]); self.ab = regs(ops[1]) | regs(ops[2]); self.srcc = regs(ops[3])
            self.uses = self.ab | self.srcc
            self.passes = 8 if "32x32" in op else 4
        elif self.valu:
            if op.startswith("v_cmp"):
                self.defs = regs(ops[0]); self.uses = set().union(*[regs(o) for o in ops[1:]])
                if op.startswith("v_cmpx"):
                    self.defs.add(("exec", 0))
            elif self.permlane and "swap" in op:
                self.defs = regs(ops[0]) | regs(ops[1]); self.uses = set(self.defs)
            else:
                self.defs = regs(ops[0]); k = 1
                if "_co_" in op:
                    self.defs |= regs(ops[1]); k = 2
                self.uses = set().union(*[regs(o) for o in ops[k:]]) if len(ops) > k else set()
                if op.startswith(("v_fmac", "v_dot2c", "v_writelane")) or self.dpp:
                    self.uses |= regs(ops[0])
        elif self.ds:
            if op.startswith(("ds_read", "ds_bpermute", "ds_permute", "ds_swizzle")) or "_rtn" in op:
                self.defs = regs(ops[0]); self.uses = set().union(*[regs(o) for o in ops[1:]])
                if "d16" in op:
                    self.uses |= self.defs
            else:
                self.uses = set().union(*[regs(o) for o in ops])
            if "addtid" in op:
                self.uses.add(("m0", 0))
        elif self.vmem:
            allr = [regs(o) for o in ops]
            lds = bool(re.search(r"\blds\b", s)) or "_lds_" in op
            self.ldsdma = lds
            if "load" in op and not lds:
                self.defs = allr[0]; self.uses = set().union(*allr[1:])
            elif "atomic" in op and re.search(r"\bsc0\b", s):
                self.defs = allr[0]; self.uses = set().union(*allr)
            else:
                self.uses = set().union(*allr) if allr else set()
                if "store" in op and ("x4" in op or "x3" in op):
                    self.sdata = allr[0] if op.startswith("buffer_") else allr[1]
            if lds:
                self.uses.add(("m0", 0))
        elif self.salu:
            if op.startswith(("s_cmp", "s_cbranch", "s_branch", "s_waitcnt", "s_barrier", "s_nop", "s_endpgm", "s_sleep", "s_setprio", "s_setpc")):
                self.uses = set().union(*[regs(o) for o in ops]) if ops else set()
            else:
                self.defs = regs(ops[0]); self.uses = set().union(*[regs(o) for o in ops[1:]]) if len(ops) > 1 else set()
                if "saveexec" in op:
                    self.defs.add(("exec", 0))

def vec(rs):
    return {r for r in rs if r[0] in "va" and len(r[0]) == 1}
def sca(rs):
    return {r for r in rs if r[0] == "s" or r[0] == "vcc"}

def need(p, c):
    n = 0
    if p.mfma:
        d = p.defs
        big = 12 if p.passes == 8 else 8
        if c.mfma:
            if d & c.ab: n = max(n, big)
            if d & c.srcc and not (d == c.srcc and p.passes == c.passes): n = max(n, big - 2)
            if d & c.defs and not (d == c.defs): n = max(n, big - 2)
        elif c.valu or c.ds or c.vmem:
            if d & (c.uses | c.defs): n = max(n, big)
        if c.valu and p.srcc & c.defs: n = max(n, 7 if p.passes == 8 else 3)
    if p.valu:
        dv = vec(p.defs); ds = sca(p.defs)
        if c.mfma and dv & c.uses: n = max(n, 2)
        if c.mfma and ("exec", 0) in p.defs: n = max(n, 4)
        if c.valu:
            if p.trans and not c.trans and dv & c.uses: n = max(n, 1)
            if c.dpp and dv & c.uses: n = max(n, 2)
            if c.permlane and dv & c.uses: n = max(n, 2)
            if c.rdlane and dv & c.uses: n = max(n, 1)
            if ds & c.uses: n = max(n, 4 if c.op.startswith(("v_readlane", "v_writelane")) else 2)
            if ("exec", 0) in p.defs and (c.dpp or c.rdlane or c.permlane): n = max(n, 5)
        if p.dot and (c.valu or c.mfma or c.ds or c.vmem) and dv & (c.uses | c.defs):
            same_c = c.op == p.op and not (dv & (regs(c.ops[1]) | regs(c.ops[2])))
            if not same_c: n = max(n, 3)
        if p.trans and (c.ds or c.vmem or c.mfma) and dv & c.uses: n = max(n, 2)
        if c.vmem and ds & c.uses: n = max(n, 5)
    if p.vmem and p.sdata and (c.valu or c.mfma or c.ds or c.vmem) and p.sdata & c.defs: n = max(n, 2)
    if p.salu and ("m0", 0) in p.defs and ("m0", 0) in c.uses and (c.vmem or c.ds): n = max(n, 1)
    return n

WINDOW = 14

def fix(lines):
    ins = [I(l) for l in lines]
    out = []
    added = 0
    for c in ins:
        if c.is_inst:
            dist = 0; req = 0
            for p in reversed(out):
                if not p.is_inst: continue
                if p.op in ("s_branch", "s_endpgm", "s_setpc_b64"): break
                r = need(p, c) - dist
                req = max(req, r)
                dist += p.nop
                if dist >= WINDOW: break
            if req > 0:
                out.append(I(f"    s_nop {req-1}")); added += 1
        out.append(c)
    check_branches(out)
    return [i.line for i in out], added

def check_branches(ins):
    lab = {i.label: k for k, i in enumerate(ins) if i.label}
    for k, b in enumerate(ins):
        if b.is_inst and b.op.startswith(("s_cbranch", "s_branch")) and b.ops[0] in lab:
            pre = []
            for p in reversed(ins[:k + 1]):
                if p.is_inst:
                    pre.append(p)
                    if len(pre) > WINDOW: break
            post = [c for c in ins[lab[b.ops[0]]:lab[b.ops[0]] + 60] if c.is_inst][:WINDOW]
            dc = 0
            for c in post:
                dist = dc
                for p in pre:
                    if need(p, c) > dist:
                        raise RuntimeError(f"hazard across branch to {b.ops[0]}: {p.line!r} -> {c.line!r} dist {dist}")
                    dist += p.nop
                dc += c.nop
```

```python
from asmlib import *

P = dict(q=4, k=6, v=8, shift=10, ssmk=12, ssmD=14, u=16, lar=18, aim=20, cre=22, cim=24, ldt=26,
         dskip=28, gw=30, out=32, dbg=34, ws=36)
ROW = 1152
NBYTES = 2048 * 576 * 2

def sp(n):
    return f"s[{P[n]}:{P[n]+1}]"

def load_kernargs(a):
    a("""    s_load_dwordx16 s[4:19], s[0:1], 0
    s_load_dwordx16 s[20:35], s[0:1], 64
    s_load_dwordx2 s[36:37], s[0:1], 128""")

def f32(x):
    import struct
    return "0x%08x" % struct.unpack("<I", struct.pack("<f", x))[0]

LOG2E = 1.4426950408889634
LOG2E_HI = 1.44268798828125
LOG2E_LO = LOG2E - LOG2E_HI

def exp_bf16(a, dst, x, t0, t1, s_hi, s_lo):
    a(f"""    v_mul_f32 v{t0}, s{s_hi}, v{x}
    v_rndne_f32 v{t1}, v{t0}
    v_sub_f32 v{t0}, v{t0}, v{t1}
    v_fma_f32 v{t0}, s{s_lo}, v{x}, v{t0}
    v_exp_f32 v{t0}, v{t0}
    v_cvt_i32_f32 v{t1}, v{t1}
    v_ldexp_f32 v{dst}, v{t0}, v{t1}""")

def cmul(a, d, x, w, t):
    a(f"""    v_pk_mul_f32 v[{t}:{t+1}], v[{x}:{x+1}], v[{w}:{w+1}] op_sel_hi:[1,0]
    v_pk_fma_f32 v[{d}:{d+1}], v[{x}:{x+1}], v[{w}:{w+1}], v[{t}:{t+1}] op_sel:[1,1,0] op_sel_hi:[0,1,1] neg_lo:[1,0,0]""")

MROW = 544

def l_rows():
    rows = [(a_, b) for a_ in (0, 1) for b in range(8)]
    rows += [(a_, b) for a_ in (2, 3) for b in (0, 2, 4, 6)]
    rows += [(a_, b) for a_ in (4, 5, 6, 7) for b in (0, 4)]
    rows += [(a_, 0) for a_ in range(8, 17)]
    return rows
```

```python
import sys
sys.path.insert(0, "gen")
from parts import *
import hz

XT_BYTES = 144 * 32768
KB_OFF = 0x500000
G_OFF = 0x800000
STAMPS = "--stamps" in sys.argv

def k1(a):
    a(kstart("k1_kernel"))
    if STAMPS: stamp(a, 0)
    a("""    s_cmp_ge_u32 s2, 256
    s_cbranch_scc1 L1_end""")
    load_kernargs(a)
    a("""    v_lshrrev_b32 v1, 6, v0
    v_and_b32 v2, 63, v0
    v_readfirstlane_b32 s3, v1
    v_mov_b32 v3, 0
    v_mov_b32 v4, 192
    ds_write_b32 v4, v3
    s_cmp_ge_u32 s3, 5
    s_cbranch_scc1 L1_kgen""")
    a(f"""    s_mul_i32 s38, s2, {8*ROW}
    v_lshlrev_b32 v5, 2, v0
    v_mov_b32 v8, 0x80000000
    v_cmp_gt_u32 vcc, 288, v0
    v_add_u32 v6, s38, v5
    v_subrev_u32 v7, {3*ROW}, v6
    v_cndmask_b32 v6, v8, v6, vcc
    v_cndmask_b32 v7, v8, v7, vcc
    v_lshlrev_b32 v9, 4, v0
    s_movk_i32 s39, {4*ROW}
    s_waitcnt lgkmcnt(0)""")
    srd(a, 40, P['k'], NBYTES); srd(a, 44, P['v'], NBYTES); srd(a, 48, P['q'], NBYTES)
    srd(a, 52, P['shift'], 4608); srd(a, 56, P['gw'], 1152); srd(a, 60, P['ws'], XT_BYTES)
    K0, V0, Q0, W0, GW = 16, 28, 36, 44, 48
    a(f"    buffer_load_dwordx4 v[{W0}:{W0+3}], v9, s[52:55], 0 offen")
    for j in range(3):
        a(f"    buffer_load_dword v{K0+j}, v7, s[40:43], 0 offen offset:{j*ROW}")
    def rowload(reg, s, r):
        a(f"    buffer_load_dword v{reg}, v6, s[{s}:{s+3}], {'s39' if r >= 4 else '0'} offen offset:{(r%4)*ROW}")
    for r in range(8): rowload(K0 + 3 + r, 40, r)
    for r in range(8): rowload(V0 + r, 44, r)
    a(f"    buffer_load_dword v{GW}, v5, s[56:59], 0 offen")
    for r in range(8): rowload(Q0 + r, 48, r)
    a("    s_barrier")
    a(f"""    s_lshr_b32 s64, s2, 1
    s_and_b32 s64, s64, 7
    s_lshl_b32 s64, s64, 4
    s_lshl_b32 s65, s2, 7
    v_lshrrev_b32 v10, 1, v0
    v_lshlrev_b32 v10, 15, v10
    v_and_b32 v11, 1, v0
    v_lshl_add_u32 v10, v11, 6, v10
    v_add_u32 v10, s65, v10
    v_xor_b32 v10, s64, v10
    v_xor_b32 v11, 16, v10
    v_xor_b32 v12, 32, v10
    v_xor_b32 v13, 48, v10
    s_mov_b32 s66, 0xffff0000
    s_mov_b32 s67, 0x05040100
    s_mov_b32 s68, 0x07060302""")
    WP, KP, AC = 50, 58, 80
    a("    s_waitcnt vmcnt(28)")
    for j in range(4):
        lo, hi = W0 + j // 2, W0 + 2 + j // 2
        if j % 2 == 0:
            a(f"    v_lshlrev_b32 v{WP+2*j}, 16, v{lo}\n    v_lshlrev_b32 v{WP+2*j+1}, 16, v{hi}")
        else:
            a(f"    v_and_b32 v{WP+2*j}, s66, v{lo}\n    v_and_b32 v{WP+2*j+1}, s66, v{hi}")
    a("    s_waitcnt vmcnt(17)")
    for i in range(11):
        a(f"    v_lshlrev_b32 v{KP+2*i}, 16, v{K0+i}\n    v_and_b32 v{KP+2*i+1}, s66, v{K0+i}")
    for r in range(8):
        a(f"    v_pk_mul_f32 v[{AC+2*r}:{AC+2*r+1}], v[{KP+2*(r+3)}:{KP+2*(r+3)+1}], v[{WP}:{WP+1}]")
    for j in range(1, 4):
        for r in range(8):
            i = r + 3 - j
            a(f"    v_pk_fma_f32 v[{AC+2*r}:{AC+2*r+1}], v[{KP+2*i}:{KP+2*i+1}], v[{WP+2*j}:{WP+2*j+1}], v[{AC+2*r}:{AC+2*r+1}]")
    a("    s_waitcnt vmcnt(9)")
    for r in range(8):
        a(f"    v_lshlrev_b32 v{KP+2*r}, 16, v{V0+r}\n    v_and_b32 v{KP+2*r+1}, s66, v{V0+r}")
    for r in range(8):
        a(f"    v_pk_mul_f32 v[{AC+2*r}:{AC+2*r+1}], v[{AC+2*r}:{AC+2*r+1}], v[{KP+2*r}:{KP+2*r+1}]")
    G0 = 96
    for h in range(2):
        for m in range(4):
            a(f"    v_cvt_pk_bf16_f32 v{G0+8*h+4+m}, v{AC+2*(7-2*m)+h}, v{AC+2*(6-2*m)+h}")
    a(f"    buffer_store_dwordx4 v[{G0+4}:{G0+7}], v11, s[60:63], 0 offen")
    a(f"    buffer_store_dwordx4 v[{G0+12}:{G0+15}], v13, s[60:63], 0 offen")
    a("    s_waitcnt vmcnt(2)")
    for h in range(2):
        for m in range(4):
            a(f"    v_perm_b32 v{G0+8*h+m}, v{Q0+6-2*m}, v{Q0+7-2*m}, s{67+h}")
    a(f"    buffer_store_dwordx4 v[{G0}:{G0+3}], v10, s[60:63], 0 offen")
    a(f"    buffer_store_dwordx4 v[{G0+8}:{G0+11}], v12, s[60:63], 0 offen")
    PR = 58
    for r in range(8):
        a(f"    v_dot2_f32_bf16 v{PR+r}, v{Q0+r}, v{GW}, 0")
    for i in range(4):
        a(f"    v_permlane32_swap_b32 v{PR+i}, v{PR+i+4}")
    for i in range(4):
        a(f"    v_add_f32 v{PR+i}, v{PR+i}, v{PR+i+4}")
    for i in range(2):
        a(f"    v_permlane16_swap_b32 v{PR+i}, v{PR+i+2}")
    for i in range(2):
        a(f"    v_add_f32 v{PR+i}, v{PR+i}, v{PR+i+2}")
    a(f"""    v_add_f32 v{PR+2}, v{PR}, v{PR} row_ror:8 row_mask:0xf bank_mask:0x3
    v_add_f32 v{PR+2}, v{PR+1}, v{PR+1} row_ror:8 row_mask:0xf bank_mask:0xc
    v_add_f32 v{PR+3}, v{PR+2}, v{PR+2} row_half_mirror row_mask:0xf bank_mask:0xf
    v_add_f32 v{PR+2}, v{PR+3}, v{PR+3} quad_perm:[1,0,3,2] row_mask:0xf bank_mask:0xf
    v_add_f32 v{PR+3}, v{PR+2}, v{PR+2} quad_perm:[2,3,0,1] row_mask:0xf bank_mask:0xf
    v_lshrrev_b32 v14, 3, v0
    v_lshlrev_b32 v14, 2, v14
    ds_write_b32 v14, v{PR+3}
    v_mov_b32 v15, 1
    s_mov_b64 exec, 1
    s_waitcnt lgkmcnt(0)
    ds_add_rtn_u32 v15, v4, v15
    s_waitcnt lgkmcnt(0)
    v_readfirstlane_b32 s69, v15
    s_mov_b64 exec, 0xff
    s_cmp_lg_u32 s69, 4
    s_cbranch_scc1 L1_fin
    v_lshlrev_b32 v14, 2, v2
    ds_read_b32 v16, v14
    ds_read_b32 v17, v14 offset:32
    ds_read_b32 v18, v14 offset:64
    ds_read_b32 v19, v14 offset:96
    ds_read_b32 v20, v14 offset:128
    s_lshl_b32 s70, s2, 5
    s_add_u32 s70, s70, {G_OFF}
    v_add_u32 v14, s70, v14
    s_waitcnt lgkmcnt(0)
    v_add_f32 v16, v16, v17
    v_add_f32 v18, v18, v19
    v_add_f32 v16, v16, v20
    v_add_f32 v16, v16, v18
    v_mul_f32 v16, {f32(-LOG2E)}, v16
    v_exp_f32 v16, v16
    v_add_f32 v16, 1.0, v16
    v_rcp_f32 v16, v16
    global_store_dword v14, v16, {sp('ws')}
    s_branch L1_fin""")
    a(f"""L1_kgen:
    s_sub_u32 s38, s3, 5
    s_lshl_b32 s39, s38, 8
    s_add_u32 s39, s39, s2
    s_mul_i32 s38, s38, {57*MROW + 1536}
    s_add_u32 s38, s38, 256
    s_waitcnt lgkmcnt(0)
    s_barrier
    s_cmp_ge_u32 s39, 576
    s_cbranch_scc1 L1_fin
    s_lshl_b32 s40, s39, 8
    v_lshl_add_u32 v5, v2, 2, s40
    s_lshl_b32 s41, s39, 1
    v_mov_b32 v6, s41
    global_load_ushort v8, v6, {sp('ldt')}
    global_load_dword v9, v5, {sp('lar')}
    global_load_dword v10, v5, {sp('aim')}
    global_load_dword v11, v5, {sp('cre')}
    global_load_dword v12, v5, {sp('cim')}
    s_mov_b32 s42, {f32(LOG2E_HI)}
    s_mov_b32 s43, {f32(LOG2E_LO)}
    s_mov_b32 s44, 0xffff0000
    s_mov_b32 s45, {f32(-LOG2E)}
    s_mov_b32 s46, {f32(0.15915494309189535)}
    v_lshl_add_u32 v7, v2, 3, s38
    s_waitcnt vmcnt(3)
    v_lshlrev_b32 v8, 16, v8
    v_lshlrev_b32 v14, 16, v9
    v_and_b32 v15, s44, v9""")
    exp_bf16(a, 8, 8, 16, 17, 42, 43)
    exp_bf16(a, 14, 14, 16, 17, 42, 43)
    exp_bf16(a, 15, 15, 16, 17, 42, 43)
    a(f"""    v_cvt_pk_bf16_f32 v8, v8, v8
    v_cvt_pk_bf16_f32 v9, v14, v15
    v_and_b32 v8, s44, v8
    v_lshlrev_b32 v14, 16, v9
    v_and_b32 v15, s44, v9
    v_mul_f32 v14, v14, v8
    v_mul_f32 v15, v15, v8
    v_mul_f32 v14, s45, v14
    v_mul_f32 v15, s45, v15
    s_waitcnt vmcnt(0)
    v_lshlrev_b32 v16, 16, v10
    v_and_b32 v17, s44, v10
    v_mul_f32 v16, v16, v8
    v_mul_f32 v17, v17, v8
    v_mul_f32 v16, s46, v16
    v_mul_f32 v17, s46, v17
    v_add_f32 v8, v8, v8""")
    W1, W8, W128, W2, W4, X, Y, T = [[20 + 4 * i, 22 + 4 * i] for i in range(8)]
    a(f"""    v_lshlrev_b32 v{X[0]}, 16, v11
    v_lshlrev_b32 v{X[0]+1}, 16, v12
    v_and_b32 v{X[1]}, s44, v11
    v_and_b32 v{X[1]+1}, s44, v12""")
    for m in range(2):
        a(f"    v_mul_f32 v{X[m]}, v{X[m]}, v8\n    v_mul_f32 v{X[m]+1}, v{X[m]+1}, v8")
    for (W, p, sg) in ((W8, 8.0, -1), (W1, 1.0, 1), (W128, 128.0, 1)):
        for m in range(2):
            t = T[m]
            a(f"""    v_mul_f32 v{t}, {f32(p)}, v{14+m}
    v_mul_f32 v{t+1}, {f32(sg*p)}, v{16+m}
    v_exp_f32 v{t}, v{t}
    v_fract_f32 v{t+1}, v{t+1}
    v_cos_f32 v{W[m]}, v{t+1}
    v_sin_f32 v{W[m]+1}, v{t+1}
    v_pk_mul_f32 v[{W[m]}:{W[m]+1}], v[{W[m]}:{W[m]+1}], v[{t}:{t+1}] op_sel_hi:[1,0]""")
    PK = [56, 58, 60, 62]
    cnt = [0]
    def put(row, src):
        r = PK[cnt[0] % 4]; cnt[0] += 1
        a(f"""    v_cvt_pk_bf16_f32 v{r}, v{src[0]}, v{src[0]+1}
    v_cvt_pk_bf16_f32 v{r+1}, v{src[1]}, v{src[1]+1}
    ds_write_b64 v7, v[{r}:{r+1}] offset:{row*MROW}""")
    def cm(d, x, w):
        for m in range(2): cmul(a, d[m], x[m], w[m], T[m])
    a(f"    v_mov_b32 v64, 0x3f80\n    v_mov_b32 v65, 0x3f80\n    ds_write_b64 v7, v[64:65] offset:{41*MROW}")
    put(42, W8)
    cm(Y, W8, W8); put(43, Y)
    for j in range(3, 16):
        cm(Y, Y, W8); put(41 + j, Y)
    cm(W2, W1, W1); cm(W4, W2, W2)
    rows = l_rows()
    idx = {ab: i for i, ab in enumerate(rows)}
    for a_ in range(17):
        if a_ > 0: cm(X, X, W128)
        put(idx[(a_, 0)], X)
        bs = [b for (aa, b) in rows if aa == a_ and b > 0]
        src = X
        for b in bs:
            step = {1: W1, 2: W2, 4: W4}[bs[0]]
            cm(Y, src, step); src = Y
            put(idx[(a_, b)], Y)
    a(f"""    v_and_b32 v5, 15, v2
    v_lshrrev_b32 v6, 4, v2
    v_mul_u32_u24 v8, {MROW}, v5
    v_lshl_add_u32 v8, v6, 4, v8
    v_add_u32 v8, s38, v8
    s_waitcnt lgkmcnt(0)""")
    ACC = [20, 24, 28]
    OP = 64
    def rd(kk):
        b = OP + 16 * (kk % 2)
        for t in range(3):
            a(f"    ds_read_b128 v[{b+4*t}:{b+4*t+3}], v8 offset:{16*t*MROW + 64*kk}")
        a(f"    ds_read_b128 v[{b+12}:{b+15}], v8 offset:{41*MROW + 64*kk}")
    rd(0)
    for kk in range(8):
        if kk < 7:
            rd(kk + 1); a("    s_waitcnt lgkmcnt(4)")
        else:
            a("    s_waitcnt lgkmcnt(0)")
        b = OP + 16 * (kk % 2)
        for t in range(3):
            c = "0" if kk == 0 else f"v[{ACC[t]}:{ACC[t]+3}]"
            a(f"    v_mfma_f32_16x16x32_bf16 v[{ACC[t]}:{ACC[t]+3}], v[{b+4*t}:{b+4*t+3}], v[{b+12}:{b+15}], {c}")
    TAB = 57 * MROW
    a(f"""    s_add_u32 s47, s38, {TAB}
    s_lshl_b32 s48, s39, 12
    s_add_u32 s48, s48, {KB_OFF}
    v_lshlrev_b32 v10, 7, v6
    v_lshl_add_u32 v10, v5, 3, v10
    v_add_u32 v10, 512, v10
    v_add_u32 v11, 4, v10
    v_lshlrev_b32 v12, 7, v6
    v_lshl_add_u32 v12, v5, 2, v12
    v_add_u32 v12, 512, v12
    v_add_u32 v13, 64, v12
    v_cmp_gt_u32 vcc, 32, v2
    v_cndmask_b32 v10, v12, v10, vcc
    v_cndmask_b32 v11, v13, v11, vcc
    v_add_u32 v10, s47, v10
    v_add_u32 v11, s47, v11
    v_lshlrev_b32 v12, 7, v6
    v_lshl_add_u32 v12, v5, 1, v12
    v_add_u32 v12, s47, v12
    v_lshrrev_b32 v13, 1, v6
    v_lshlrev_b32 v13, 8, v13
    v_lshl_add_u32 v13, v5, 4, v13
    v_and_b32 v14, 1, v6
    v_lshl_add_u32 v13, v14, 3, v13
    v_add_u32 v13, s48, v13
    v_cvt_pk_bf16_f32 v32, v20, v21
    v_cvt_pk_bf16_f32 v33, v22, v23
    v_cvt_pk_bf16_f32 v34, v24, v25
    v_cvt_pk_bf16_f32 v35, v26, v27
    v_cvt_pk_bf16_f32 v36, v28, v29
    v_cvt_pk_bf16_f32 v37, v30, v31
    global_store_dwordx2 v13, v[32:33], {sp('ws')}
    ds_write_b32 v10, v34
    ds_write_b32 v11, v35
    ds_write_b16 v12, v36 offset:1024
    ds_write_b16_d16_hi v12, v36 offset:1056
    ds_write_b16 v12, v37 offset:1088
    ds_write_b16_d16_hi v12, v37 offset:1120
    v_lshl_add_u32 v14, v2, 2, s47
    s_mov_b32 s50, 0x01000100
    s_mov_b32 s51, 0x03020302
    s_mov_b32 s52, 0x05040302
    s_waitcnt lgkmcnt(0)
    ds_read2_b32 v[40:41], v14 offset0:128 offset1:129
    ds_read2_b32 v[42:43], v14 offset0:192 offset1:193
    v_add_u32 v14, 1024, v14
    ds_read2_b32 v[44:45], v14 offset0:0 offset1:1
    v_lshl_add_u32 v15, v2, 3, s48
    v_lshl_add_u32 v16, v2, 4, s48
    v_lshl_add_u32 v17, v2, 5, s48
    s_waitcnt lgkmcnt(0)
    v_perm_b32 v48, v40, v40, s50
    v_perm_b32 v49, v41, v40, s52
    global_store_dwordx2 v15, v[48:49], {sp('ws')} offset:512
    v_perm_b32 v52, v42, v42, s50
    v_mov_b32 v53, v42
    v_perm_b32 v54, v42, v42, s51
    v_perm_b32 v55, v43, v43, s50
    global_store_dwordx4 v16, v[52:55], {sp('ws')} offset:1024
    v_perm_b32 v56, v44, v44, s50
    v_perm_b32 v57, v44, v44, s50
    v_mov_b32 v58, v44
    v_perm_b32 v59, v44, v44, s51
    v_perm_b32 v60, v44, v44, s51
    v_perm_b32 v61, v44, v44, s51
    v_perm_b32 v62, v45, v45, s50
    v_perm_b32 v63, v45, v45, s50
    global_store_dwordx4 v17, v[56:59], {sp('ws')} offset:2048
    global_store_dwordx4 v17, v[60:63], {sp('ws')} offset:2064
L1_fin:""")
    if STAMPS:
        a("    s_mov_b64 exec, -1\n    s_waitcnt vmcnt(0)")
        stamp(a, 1)
        a("    s_mul_i32 s75, s2, 8\n    s_add_u32 s75, s75, s3\n    v_and_b32 v0, 63, v0")
        stamps_out(a, 2, P['ws'], wg="s75", vt=120)
    a("L1_end:\n    s_endpgm")
K1_LDS = 256 + 3 * (57 * MROW + 1536)

XO = 0; HO = 36864; HOD = 4160; HCV = 8320; HWV = 16640; GO = HO + 4 * HWV
K2_LDS = GO + 8192

def conv(a, ACC, S, AB, BB, DOP, nxt):
    def reads(u0, st):
        l = []
        for al in range(8):
            o = (al & 1) * 128 + 16 * u0
            r = S[st] + 4 * al
            l.append(f"    ds_read_b128 v[{S[st]+32+4*al}:{S[st]+32+4*al+3}], v{BB[u0%4]} offset:{4096*al + (2048 if u0 < 4 else 0)}")
            l.append(f"    ds_read2_b32 v[{r}:{r+1}], v{AB[al//2]} offset0:{o} offset1:{o+1}")
            l.append(f"    ds_read2_b32 v[{r+2}:{r+3}], v{AB[al//2]} offset0:{o+2} offset1:{o+3}")
        return l
    if ACC is None:
        return reads(0, 0)
    for u0 in range(8):
        st = u0 % 2
        mf = []
        if u0 == 0:
            for I in range(8):
                mf.append(f"    v_mfma_f32_16x16x32_bf16 v[{ACC+4*I}:{ACC+4*I+3}], v[{DOP}:{DOP+3}], v[{S[st]+32+4*I}:{S[st]+32+4*I+3}], 0")
        for I in range(8):
            for al in range(I + 1):
                be = I - al
                mf.append(f"    v_mfma_f32_16x16x32_bf16 v[{ACC+4*I}:{ACC+4*I+3}], v[{S[st]+4*al}:{S[st]+4*al+3}], v[{S[st]+32+4*be}:{S[st]+32+4*be+3}], v[{ACC+4*I}:{ACC+4*I+3}]")
        a("    s_waitcnt lgkmcnt(0)")
        if u0 < 7:
            rd = reads(u0 + 1, 1 - st)
        elif nxt is not None:
            nxt(); rd = reads(0, 0)
        else:
            rd = []
        for i, m in enumerate(mf):
            a(m)
            if i < len(rd): a(rd[i])

def k2(a):
    a(kstart("k2_kernel"))
    if STAMPS: stamp(a, 0)
    a("""    s_cmp_ge_u32 s2, 144
    s_cbranch_scc1 L2_end""")
    load_kernargs(a)
    a(f"""    v_lshrrev_b32 v1, 6, v0
    v_and_b32 v2, 63, v0
    v_readfirstlane_b32 s3, v1
    s_and_b32 s38, s2, 7
    s_mul_i32 s38, s38, 18
    s_lshr_b32 s39, s2, 3
    s_add_u32 s38, s38, s39
    s_lshl_b32 s39, s38, 2
    s_add_u32 s39, s39, s3
    s_lshl_b32 s64, s39, 12
    v_lshlrev_b32 v3, 4, v2
    v_subrev_u32 v4, 4, v3
    s_mul_i32 s65, s3, {HWV}
    s_add_u32 s65, s65, {HO}
    s_lshl_b32 s66, s39, 1
    s_and_b32 s66, s66, -4
    s_waitcnt lgkmcnt(0)
    s_load_dword s70, {sp('ssmD')}, s66
    s_load_dword s71, {sp('dskip')}, s66
    s_add_u32 s40, s{P['ssmk']}, s64
    s_addc_u32 s41, s{P['ssmk']+1}, 0
    s_mov_b32 s42, 4096
    s_mov_b32 s43, 0x00020000
    s_add_u32 s64, s64, {KB_OFF}
    s_add_u32 s44, s{P['ws']}, s64
    s_addc_u32 s45, s{P['ws']+1}, 0
    s_mov_b32 s46, 4096
    s_mov_b32 s47, 0x00020000""")
    srd(a, 48, P['ws'], G_OFF + 8192); srd(a, 52, P['out'], NBYTES)
    HR = [128, 160]
    def hload(c):
        s = 40 + 4 * c
        for j in range(4):
            a(f"    buffer_load_dwordx4 v[{HR[c]+4*j}:{HR[c]+4*j+3}], v3, s[{s}:{s+3}], 0 offen offset:{1024*j}")
            if j == 0:
                a(f"    buffer_load_dword v{HR[c]+16}, v4, s[{s}:{s+3}], 0 offen")
            else:
                a(f"    buffer_load_dword v{HR[c]+16+j}, v3, s[{s}:{s+3}], 0 offen offset:{1024*j-4}")
    hload(0)
    a(f"""    s_lshl_b32 s67, s38, 15
    s_lshl_b32 s68, s3, 13
    s_add_u32 s67, s67, s68
    s_add_u32 s68, s68, {XO + 4096}""")
    for j in range(8):
        if j % 4 == 0:
            a(f"    s_add_u32 m0, s68, {1024*j}\n    s_add_u32 s69, s67, {1024*j}")
        a(f"    buffer_load_dwordx4 v3, s[48:51], s69 offen offset:{1024*(j%4)} lds")
    hload(1)
    a(f"""    s_lshl_b32 s68, s3, 11
    s_add_u32 s69, s68, {G_OFF}
    s_add_u32 m0, s68, {GO}
    s_nop 0
    buffer_load_dwordx4 v3, s[48:51], s69 offen lds
    buffer_load_dwordx4 v3, s[48:51], s69 offen offset:1024 lds
    v_mov_b32 v8, 0
    v_mov_b32 v9, 0
    v_mov_b32 v10, 0
    v_mov_b32 v11, 0
    v_lshlrev_b32 v5, 4, v0
    ds_write_b128 v5, v[8:11] offset:{XO}
    v_bfe_u32 v5, v2, 1, 2
    v_mul_u32_u24 v5, {HOD}, v5
    v_and_b32 v6, 1, v2
    v_lshl_add_u32 v5, v6, 4, v5
    v_add_u32 v5, s65, v5
    ds_write_b128 v5, v[8:11]
    v_and_b32 v12, 15, v2
    v_lshrrev_b32 v13, 4, v2
    v_lshrrev_b32 v5, 1, v12
    v_lshlrev_b32 v6, 2, v13
    v_sub_u32 v5, v5, v6
    v_add_u32 v5, 13, v5
    v_lshlrev_b32 v5, 2, v5
    v_and_b32 v6, 1, v12
    v_xor_b32 v6, 1, v6
    v_mul_u32_u24 v6, {HOD}, v6
    v_add3_u32 v16, v5, v6, s65
    v_add_u32 v17, 1024, v16
    v_add_u32 v18, 2048, v16
    v_add_u32 v19, 3072, v16
    s_lshl_b32 s72, s3, 1
    s_or_b32 s73, s72, 1
    v_lshrrev_b32 v5, 1, v13
    v_add_u32 v5, v5, v12
    v_and_b32 v6, 1, v13
    v_lshlrev_b32 v6, 7, v6""")
    for u in range(4):
        a(f"""    v_add_u32 v7, {-1-2*u}, v5
    v_and_b32 v14, 7, v7
    v_xor_b32 v14, s73, v14
    v_lshl_add_u32 v14, v14, 4, v6
    v_lshl_add_u32 v14, v7, 8, v14
    v_add_u32 v{20+u}, {XO + 2048}, v14""")
    a(f"""    s_waitcnt lgkmcnt(0)
    s_and_b32 s74, s39, 1
    s_lshl_b32 s74, s74, 4
    s_lshr_b32 s70, s70, s74
    s_lshr_b32 s71, s71, s74
    s_and_b32 s70, s70, 0xffff
    s_and_b32 s71, s71, 0xffff
    v_lshrrev_b32 v5, 3, v12
    v_add_u32 v5, 2, v5
    v_and_b32 v6, 7, v12
    v_xor_b32 v6, 7, v6
    v_and_b32 v7, 1, v6
    v_lshlrev_b32 v7, 4, v7
    v_lshrrev_b32 v6, 1, v6
    v_lshl_add_u32 v5, v5, 2, v6
    v_lshlrev_b32 v6, 2, v13
    v_sub_u32 v5, v5, v6
    v_lshlrev_b32 v14, v7, s70
    v_lshlrev_b32 v15, v7, s71""")
    for j in range(4):
        a(f"""    v_cmp_eq_u32 vcc, {j}, v5
    v_cndmask_b32 v{24+j}, 0, v14, vcc
    v_cndmask_b32 v{28+j}, 0, v15, vcc""")
    a("    v_add_u32 v5, s65, v3")
    def hstore(c):
        for j in range(4):
            r = HR[c] + 4 * j
            o = 192 + 4 * j
            a(f"""    ds_write_b128 v5, v[{r}:{r+3}] offset:{c*HCV + 32 + 1024*j}
    v_alignbit_b32 v{o}, v{r}, v{HR[c]+16+j}, 16
    v_alignbit_b32 v{o+1}, v{r+1}, v{r}, 16
    v_alignbit_b32 v{o+2}, v{r+2}, v{r+1}, 16
    v_alignbit_b32 v{o+3}, v{r+3}, v{r+2}, 16
    ds_write_b128 v5, v[{o}:{o+3}] offset:{c*HCV + HOD + 32 + 1024*j}""")
    a("    s_waitcnt vmcnt(18)")
    hstore(0)
    a("    s_waitcnt vmcnt(2)")
    hstore(1)
    a("    s_waitcnt vmcnt(0) lgkmcnt(0)\n    s_barrier")
    if STAMPS: stamp(a, 1)
    S = [128, 192]; AB = [16, 17, 18, 19]; BB = [20, 21, 22, 23]
    for l in conv(a, None, S, AB, BB, None, None): a(l)
    def nxt():
        for r in AB: a(f"    v_add_u32 v{r}, {HCV}, v{r}")
        for r in BB: a(f"    v_xor_b32 v{r}, 16, v{r}")
    conv(a, 64, S, AB, BB, 24, nxt)
    conv(a, 96, S, AB, BB, 28, None)
    if STAMPS: stamp(a, 2)
    a(f"""    v_and_b32 v5, 7, v12
    v_xor_b32 v5, s72, v5
    v_lshlrev_b32 v5, 4, v5
    v_lshl_add_u32 v5, v12, 8, v5
    v_lshrrev_b32 v6, 1, v13
    v_lshl_add_u32 v5, v6, 7, v5
    v_and_b32 v6, 1, v13
    v_xor_b32 v6, 1, v6
    v_lshl_add_u32 v5, v6, 3, v5
    v_lshlrev_b32 v6, 6, v12
    v_lshl_add_u32 v6, v13, 4, v6
    v_lshrrev_b32 v7, 1, v6
    s_lshl_b32 s74, s3, 6
    s_add_u32 s74, s74, s65
    v_add_u32 v7, s74, v7
    v_add_u32 v6, {GO}, v6
    s_mov_b32 s75, 0xffff0000""")
    QR, GR = 128, 160
    for I in range(8):
        a(f"    ds_read_b64 v[{QR+2*I}:{QR+2*I+1}], v5 offset:{XO + 4096 + 4096*I}")
        a(f"    ds_read_b128 v[{GR+4*I}:{GR+4*I+3}], v6 offset:{1024*I}")
        if I == 3: a("    s_waitcnt lgkmcnt(0)")
    a("    s_waitcnt lgkmcnt(0)")
    for I in range(8):
        t = 192 + 4 * (I % 2)
        e0, e1 = QR + 2 * I, QR + 2 * I + 1
        A_, B_, G_ = 64 + 4 * I, 96 + 4 * I, GR + 4 * I
        a(f"""    v_and_b32 v{t}, s75, v{e1}
    v_lshlrev_b32 v{t+1}, 16, v{e1}
    v_and_b32 v{t+2}, s75, v{e0}
    v_lshlrev_b32 v{t+3}, 16, v{e0}
    v_pk_fma_f32 v[{t}:{t+1}], v[{t}:{t+1}], v[{A_}:{A_+1}], v[{B_}:{B_+1}] neg_lo:[0,0,1] neg_hi:[0,0,1]
    v_pk_fma_f32 v[{t+2}:{t+3}], v[{t+2}:{t+3}], v[{A_+2}:{A_+3}], v[{B_+2}:{B_+3}] neg_lo:[0,0,1] neg_hi:[0,0,1]
    v_pk_fma_f32 v[{t}:{t+1}], v[{t}:{t+1}], v[{G_}:{G_+1}], v[{B_}:{B_+1}]
    v_pk_fma_f32 v[{t+2}:{t+3}], v[{t+2}:{t+3}], v[{G_+2}:{G_+3}], v[{B_+2}:{B_+3}]
    v_cvt_pk_bf16_f32 v{200+2*I}, v{t}, v{t+1}
    v_cvt_pk_bf16_f32 v{201+2*I}, v{t+2}, v{t+3}
    ds_write_b64 v7, v[{200+2*I}:{201+2*I}] offset:{512*I}""")
    a(f"""    v_bfe_u32 v5, v2, 2, 2
    v_mul_u32_u24 v5, {HWV + 64}, v5
    v_and_b32 v6, 3, v2
    v_lshl_add_u32 v5, v6, 3, v5
    v_lshl_add_u32 v5, v13, 5, v5
    s_lshl_b32 s74, s3, 10
    s_add_u32 s74, s74, {HO}
    v_add_u32 v5, s74, v5
    s_mul_i32 s74, s3, {512*ROW}
    s_lshl_b32 s76, s38, 3
    s_add_u32 s74, s74, s76
    v_mul_u32_u24 v6, {ROW}, v2
    v_add_u32 v6, s74, v6
    s_waitcnt lgkmcnt(0)
    s_barrier""")
    for j in range(8):
        a(f"    ds_read_b64_tr_b16 v[{128+2*j}:{129+2*j}], v5 offset:{128*j}")
    for j in range(8):
        a(f"""    s_mov_b32 s76, {64*ROW*j}
    s_waitcnt lgkmcnt({7-j})
    buffer_store_dwordx2 v[{128+2*j}:{129+2*j}], v6, s[52:55], s76 offen""")
    if STAMPS:
        stamp(a, 3)
        a("    s_waitcnt vmcnt(0)")
        stamp(a, 4)
        stamps_out(a, 5, P['ws'], vt=40, wgoff=1024)
    a("L2_end:\n    s_endpgm")

def main(path, extra=0):
    a = Asm()
    launches = [("k1_kernel", 256, 512, K1_LDS), ("k2_kernel", 144, 256, K2_LDS)]
    launches += [("k3_kernel", 256, 64, 0)] * extra
    b = Asm()
    k1(b); k2(b)
    if extra: b(kstart("k3_kernel") + "    s_endpgm")
    lines, n = hz.fix(b.lines)
    print("nops inserted:", n)
    a(header(launches)); a("\n".join(lines))
    a(rodata()); a(kdesc("k1_kernel", 128)); a(".p2align 6"); a(kdesc("k2_kernel", 256))
    if extra: a(".p2align 6"); a(kdesc("k3_kernel", 8))
    open(path, "w").write(a.text())

if __name__ == "__main__":
    main(sys.argv[1], int(sys.argv[2]) if len(sys.argv) > 2 and sys.argv[2].isdigit() else 0)
```

```python
import sys
sys.path.insert(0, "gen")
from parts import *
import hz

STAMPS = "--stamps" in sys.argv
OPT = {k[2:].split("=")[0]: (k.split("=")[1] if "=" in k else "1") for k in sys.argv[2:] if k.startswith("--")}
TMO = int(OPT.get("tmo", 256))
HARD = 400000

XE_OFF = 0x400000
F1_OFF = 0x500000
F2_OFF = 0x502000
S1_OFF = 0x504000
S2_OFF = 0x505000
GT_OFF = 0x508000
NONCE_OFF = 0x510000
WS_SIZE = 0x520000
KROW = 288
KTAB = 57 * KROW
KSZ = (KTAB + 1536 + 127) // 128 * 128
KG0 = 0
HSZ = 8320; HOD = 4160
H0 = 3 * KSZ
XSZ = 4608
X0 = H0 + 6 * HSZ
G0 = X0 + 6 * XSZ
MISC = G0 + 4096
SH0 = MISC + 256
LDS_SIZE = SH0 + 4 * 4096
T2 = KG0
assert SH0 % 128 == 0
M_XRDY, M_CNT1, M_CNT2, M_ERDY, M_EB, M_RDONE, M_CNT0, M_KE, M_GB, M_GDONE, M_GRDY = 0, 4, 8, 12, 16, 20, 24, 28, 32, 48, 52
sX, sJ, sW = 38, 39, 3
WS = 40
sT, sTF, sCH, sH, sXB, sKG, sD = 44, 45, 46, 47, 48, 49, 50
sKH, sE = 74, 96
sHI = 51
R1, R2, R3, R4 = 52, 56, 60, 64
t0, t1, t2, t3, t4, t5 = 68, 69, 70, 71, 72, 73
vL, vN, vG, vMISC = 2, 3, 4, 5
PAR = 240

def st(a, j):
    if STAMPS and not (OPT.get("kg") and 3 <= j <= 6): stamp(a, j)
def stk(a, j):
    if STAMPS and OPT.get("kg"): stamp(a, j)

def spin(a, off, val, lab, nap=0):
    a(f"{lab}:")
    if nap: a(f"    s_sleep {nap}")
    a(f"""    ds_read_b32 v6, v{vMISC} offset:{off}
    s_waitcnt lgkmcnt(0)
    v_readfirstlane_b32 s{t0}, v6
    s_cmp_lg_u32 s{t0}, {val}
    s_cbranch_scc1 {lab}""")

def signal(a, off):
    a(f"""    v_mov_b32 v6, 1
    ds_write_b32 v{vMISC}, v6 offset:{off}""")

def poll(a, lab, vfa, vsa, sown, cnt_off, cnt_val):
    a(f"""    s_mov_b32 s{t1}, 0
{lab}_p:
    buffer_load_dword v6, v{vfa}, s[{WS}:{WS+3}], 0 offen sc1
    s_add_u32 s{t1}, s{t1}, 1
    s_waitcnt vmcnt(0)
    v_cmp_ne_u32 vcc, s{sTF}, v6
    s_cbranch_vccz {lab}_ok
    s_cmp_lt_u32 s{t1}, {TMO}
    s_cbranch_scc1 {lab}_p""")
    spin(a, cnt_off, cnt_val, lab + "_w")
    a(f"""    buffer_wbl2 sc1
    s_waitcnt vmcnt(0)
    v_mov_b32 v6, s{sT}
    v_mov_b32 v7, s{sown}
    buffer_store_dword v6, v7, s[{WS}:{WS+3}], 0 offen sc1
{lab}_q:
    s_sleep 16
    buffer_load_dword v6, v{vfa}, s[{WS}:{WS+3}], 0 offen sc1
    buffer_load_dword v7, v{vsa}, s[{WS}:{WS+3}], 0 offen sc1
    s_add_u32 s{t1}, s{t1}, 1
    s_waitcnt vmcnt(0)
    v_cmp_ne_u32 vcc, s{sTF}, v6
    v_cmp_ne_u32 s[{t2}:{t3}], s{sT}, v7
    s_nop 1
    s_and_b64 vcc, vcc, s[{t2}:{t3}]
    s_cbranch_vccz {lab}_r
    s_cmp_lt_u32 s{t1}, {HARD}
    s_cbranch_scc1 {lab}_q
{lab}_r:
    buffer_inv sc1
    s_waitcnt vmcnt(0)
{lab}_ok:""")

def publish(a, saddr, cnt_off):
    a(f"""    v_mov_b32 v6, s{sTF}
    v_mov_b32 v7, s{saddr}
    v_mov_b32 v8, 1
    s_mov_b64 exec, 1
    s_waitcnt vmcnt(0)
    buffer_store_dword v6, v7, s[{WS}:{WS+3}], 0 offen
    ds_add_u32 v{vMISC}, v8 offset:{cnt_off}
    s_mov_b64 exec, -1""")

def nonce_ready(a):
    a(f"""    v_mov_b32 v8, 1
    s_waitcnt lgkmcnt(0)
    s_add_u32 s{sT}, s{sT}, 0x9e3779b0
    s_and_b32 s{sT}, s{sT}, -16
    s_or_b32 s{sTF}, s{sTF}, s{sT}
    s_mov_b64 exec, 1
    ds_add_u32 v{vMISC}, v8 offset:{M_CNT0}
    s_mov_b64 exec, -1""")

K0, V0, Q0, W0 = 16, 28, 36, 44
WP, KP, AC, GR = 50, 58, 80, 96

def p1_loads(a, vrow, vhalo, vw, o=0):
    K0, V0, Q0, W0 = 16 + o, 28 + o, 36 + o, 44 + o
    a(f"    buffer_load_dwordx4 v[{W0}:{W0+3}], v{vw}, s[{R4}:{R4+3}], 0 offen")
    for j in range(3):
        a(f"    buffer_load_dword v{K0+j}, v{vhalo}, s[{R1}:{R1+3}], 0 offen offset:{j*ROW}")
    for (reg, s) in ((K0 + 3, R1), (V0, R2), (Q0, R3)):
        for r in range(8):
            a(f"    buffer_load_dword v{reg+r}, v{vrow}, s[{s}:{s+3}], {'s%d' % t5 if r >= 4 else '0'} offen offset:{(r%4)*ROW}")

def p1_compute(a, kv, q, after_kv=None, extra=0, o=0):
    K0, V0, Q0, W0 = 16 + o, 28 + o, 36 + o, 44 + o
    a(f"    s_waitcnt vmcnt({27+extra})")
    for j in range(4):
        lo, hi = W0 + j // 2, W0 + 2 + j // 2
        if j % 2 == 0:
            a(f"    v_lshlrev_b32 v{WP+2*j}, 16, v{lo}\n    v_lshlrev_b32 v{WP+2*j+1}, 16, v{hi}")
        else:
            a(f"    v_and_b32 v{WP+2*j}, s{sHI}, v{lo}\n    v_and_b32 v{WP+2*j+1}, s{sHI}, v{hi}")
    a(f"    s_waitcnt vmcnt({16+extra})")
    for i in range(11):
        a(f"    v_lshlrev_b32 v{KP+2*i}, 16, v{K0+i}\n    v_and_b32 v{KP+2*i+1}, s{sHI}, v{K0+i}")
    for r in range(8):
        a(f"    v_pk_mul_f32 v[{AC+2*r}:{AC+2*r+1}], v[{KP+2*(r+3)}:{KP+2*(r+3)+1}], v[{WP}:{WP+1}]")
    for j in range(1, 4):
        for r in range(8):
            i = r + 3 - j
            a(f"    v_pk_fma_f32 v[{AC+2*r}:{AC+2*r+1}], v[{KP+2*i}:{KP+2*i+1}], v[{WP+2*j}:{WP+2*j+1}], v[{AC+2*r}:{AC+2*r+1}]")
    a(f"    s_waitcnt vmcnt({8+extra})")
    for r in range(8):
        a(f"    v_lshlrev_b32 v{KP+2*r}, 16, v{V0+r}\n    v_and_b32 v{KP+2*r+1}, s{sHI}, v{V0+r}")
    for r in range(8):
        a(f"    v_pk_mul_f32 v[{AC+2*r}:{AC+2*r+1}], v[{AC+2*r}:{AC+2*r+1}], v[{KP+2*r}:{KP+2*r+1}]")
    for h in range(2):
        for m in range(4):
            a(f"    v_cvt_pk_bf16_f32 v{kv[h][m]}, v{AC+2*(7-2*m)+h}, v{AC+2*(6-2*m)+h}")
    if after_kv: after_kv()
    a(f"    s_mov_b32 s{t0}, 0x05040100\n    s_mov_b32 s{t1}, 0x07060302\n    s_waitcnt vmcnt({extra})")
    for h in range(2):
        for m in range(4):
            a(f"    v_perm_b32 v{q[h][m]}, v{Q0+6-2*m}, v{Q0+7-2*m}, s{t0+h}")

def param_loads(a):
    a(f"""    s_cmp_eq_u32 s{sW}, 1
    s_cselect_b32 s{t1}, s{sE}, s{sCH}
    s_lshl_b32 s{t0}, s{t1}, 8
    v_lshl_add_u32 v6, v{vL}, 2, s{t0}
    s_lshl_b32 s{t0}, s{t1}, 1
    v_mov_b32 v7, s{t0}
    global_load_ushort v{PAR}, v7, {sp('ldt')}
    global_load_dword v{PAR+1}, v6, {sp('lar')}
    global_load_dword v{PAR+2}, v6, {sp('aim')}
    global_load_dword v{PAR+3}, v6, {sp('cre')}
    global_load_dword v{PAR+4}, v6, {sp('cim')}""")

def zero_pads(a):
    a(f"""    v_mov_b32 v8, 0
    v_mov_b32 v9, 0
    v_mov_b32 v10, 0
    v_mov_b32 v11, 0
    v_lshrrev_b32 v6, 5, v0
    v_mul_u32_u24 v6, {XSZ}, v6
    v_and_b32 v7, 31, v0
    v_lshl_add_u32 v6, v7, 4, v6
    v_add_u32 v6, {X0}, v6
    v_subrev_u32 v12, 192, v0
    v_lshrrev_b32 v7, 1, v12
    v_mul_u32_u24 v7, {HOD}, v7
    v_and_b32 v12, 1, v12
    v_lshl_add_u32 v7, v12, 4, v7
    v_add_u32 v7, {H0}, v7
    v_cmp_le_u32 vcc, 192, v0
    v_cndmask_b32 v6, v6, v7, vcc
    v_and_b32 v7, 7, v0
    v_lshl_add_u32 v7, v7, 4, v{vMISC}
    v_cmp_le_u32 vcc, 216, v0
    v_cndmask_b32 v6, v6, v7, vcc
    ds_write_b128 v6, v[8:11]""")

def kgen(a):
    DT = PAR
    ACC = [96, 100, 104]
    OP = 128
    PK = 192
    prow = lambda r: (192 + r) if r < 41 else (108 + r - 42)
    def mfmas(first):
        for kk in range(4):
            a(f"    s_waitcnt lgkmcnt({4*(3-kk)})")
            b = OP + 16 * kk
            for t in range(3):
                a(mf(ACC[t], b + 4 * t, b + 12, 0 if (first and kk == 0) else None))
    a(f"""L_kgen:
    s_mov_b32 s{t0}, {f32(LOG2E_HI)}
    s_mov_b32 s{t1}, {f32(LOG2E_LO)}
    s_mov_b32 s{t2}, {f32(-LOG2E)}
    s_mov_b32 s{t3}, {f32(0.15915494309189535)}
    s_mov_b32 s{t4}, 0
    s_mov_b32 m0, s{sKG}
    v_mul_u32_u24 v13, {KROW}, v{vN}
    v_lshl_add_u32 v13, v{vG}, 4, v13
    v_add_u32 v13, s{sKG}, v13
    v_mov_b32 v14, 0x3f80
    ds_write_addtid_b32 v14 offset:{41*KROW}
    s_waitcnt vmcnt(0)
    v_lshlrev_b32 v{DT}, 16, v{DT}""")
    stk(a, 3)
    exp_bf16(a, DT, DT, 28, 29, t0, t1)
    a(f"""    v_cvt_pk_bf16_f32 v{DT}, v{DT}, v{DT}
    v_and_b32 v{DT}, s{sHI}, v{DT}
L_kg_it:
    v_lshlrev_b32 v14, 16, v{PAR+1}""")
    exp_bf16(a, 14, 14, 28, 29, t0, t1)
    W1, W8, W128, W2, W4, X, Y, T = [30 + 2 * i for i in range(8)]
    a(f"""    v_cvt_pk_bf16_f32 v14, v14, v14
    v_lshlrev_b32 v15, 16, v{PAR+2}
    v_and_b32 v14, s{sHI}, v14
    v_mul_f32 v15, v15, v{DT}
    v_mul_f32 v14, v14, v{DT}
    v_mul_f32 v15, s{t3}, v15
    v_mul_f32 v14, s{t2}, v14
    v_lshlrev_b32 v{X}, 16, v{PAR+3}
    v_lshlrev_b32 v{X+1}, 16, v{PAR+4}
    v_add_f32 v28, v{DT}, v{DT}
    v_mul_f32 v{X}, v{X}, v28
    v_mul_f32 v{X+1}, v{X+1}, v28""")
    for i, (W, p, sg) in enumerate(((W8, 8.0, -1), (W1, 1.0, 1), (W128, 128.0, 1))):
        t = 48 + 2 * i
        a(f"""    v_mul_f32 v{t}, {f32(p)}, v14
    v_mul_f32 v{t+1}, {f32(sg*p)}, v15
    v_exp_f32 v{t}, v{t}
    v_fract_f32 v{t+1}, v{t+1}
    v_cos_f32 v{W}, v{t+1}
    v_sin_f32 v{W+1}, v{t+1}""")
    for i in range(1, 5): a(f"    v_lshrrev_b32 v{PAR+i}, 16, v{PAR+i}")
    for i, W in enumerate((W8, W1, W128)):
        t = 48 + 2 * i
        a(f"    v_pk_mul_f32 v[{W}:{W+1}], v[{W}:{W+1}], v[{t}:{t+1}] op_sel_hi:[1,0]")
    a(f"    s_cmp_eq_u32 s{t4}, 0\n    s_cbranch_scc1 L_kg_gen")
    stk(a, 4)
    mfmas(True)
    a("L_kg_gen:")
    put = lambda row, src: a(f"    v_cvt_pk_bf16_f32 v{prow(row)}, v{src}, v{src+1}")
    cm = lambda d, x, w: cmul(a, d, x, w, T)
    put(42, W8)
    cm(Y, W8, W8); put(43, Y)
    for j in range(3, 16):
        cm(Y, Y, W8); put(41 + j, Y)
    cm(W2, W1, W1); cm(W4, W2, W2)
    rows = l_rows()
    idx = {ab: i for i, ab in enumerate(rows)}
    for a_ in range(17):
        if a_ > 0: cm(X, X, W128)
        put(idx[(a_, 0)], X)
        bs = [b for (aa, b) in rows if aa == a_ and b > 0]
        src = X
        for b in bs:
            cm(Y, src, {1: W1, 2: W2, 4: W4}[bs[0]]); src = Y
            put(idx[(a_, b)], Y)
    stk(a, 5)
    for r in list(range(42, 57)) + list(range(41)):
        a(f"    ds_write_addtid_b32 v{prow(r)} offset:{r*KROW}")
    for kk in range(4):
        b = OP + 16 * kk
        a(f"    ds_read_b128 v[{b+12}:{b+15}], v13 offset:{41*KROW + 64*kk}")
        for t in range(3):
            a(f"    ds_read_b128 v[{b+4*t}:{b+4*t+3}], v13 offset:{16*t*KROW + 64*kk}")
    a(f"""    s_add_u32 s{t4}, s{t4}, 1
    s_cmp_lt_u32 s{t4}, 2
    s_cbranch_scc1 L_kg_it
    s_add_u32 s{t0}, s{sKG}, {KTAB}
    v_lshlrev_b32 v28, 7, v{vG}
    v_lshl_add_u32 v10, v{vN}, 3, v28
    v_add_u32 v11, 4, v10
    v_lshl_add_u32 v12, v{vN}, 2, v28
    v_add_u32 v13, 64, v12
    v_cmp_gt_u32 vcc, 32, v{vL}
    v_lshl_add_u32 v28, v{vN}, 1, v28
    v_add_u32 v28, s{t0}, v28
    v_cndmask_b32 v10, v12, v10, vcc
    v_cndmask_b32 v11, v13, v11, vcc
    v_add_u32 v10, s{t0}, v10
    v_add_u32 v11, s{t0}, v11
    v_lshrrev_b32 v13, 1, v{vG}
    v_lshlrev_b32 v13, 8, v13
    v_lshl_add_u32 v13, v{vN}, 4, v13
    v_and_b32 v14, 1, v{vG}
    v_lshl_add_u32 v13, v14, 3, v13
    v_add_u32 v13, s{sKH}, v13
""")
    mfmas(False)
    stk(a, 6)
    a(f"""    v_cvt_pk_bf16_f32 v32, v96, v97
    v_cvt_pk_bf16_f32 v33, v98, v99
    v_cvt_pk_bf16_f32 v34, v100, v101
    v_cvt_pk_bf16_f32 v35, v102, v103
    v_cvt_pk_bf16_f32 v36, v104, v105
    v_cvt_pk_bf16_f32 v37, v106, v107
    ds_write_b64 v13, v[32:33] offset:32
    ds_write_b32 v10, v34 offset:512
    ds_write_b32 v11, v35 offset:512
    ds_write_b16 v28, v36 offset:1024
    ds_write_b16_d16_hi v28, v36 offset:1056
    ds_write_b16 v28, v37 offset:1088
    ds_write_b16_d16_hi v28, v37 offset:1120
    v_lshl_add_u32 v14, v{vL}, 2, s{t0}
    v_lshl_add_u32 v15, v{vL}, 3, s{sKH}
    v_lshl_add_u32 v28, v{vL}, 4, s{sKH}
    v_lshl_add_u32 v29, v{vL}, 5, s{sKH}
    ds_read2_b32 v[40:41], v14 offset0:128 offset1:129
    ds_read2_b32 v[42:43], v14 offset0:192 offset1:193
    v_add_u32 v14, 1024, v14
    ds_read2_b32 v[44:45], v14 offset0:0 offset1:1
    ds_read_b64 v[46:47], v15 offset:32
    ds_read_b32 v39, v15 offset:28
    s_mov_b32 s{t0}, 0x01000100
    s_mov_b32 s{t1}, 0x03020302
    s_mov_b32 s{t2}, 0x05040302
    s_waitcnt lgkmcnt(4)
    v_perm_b32 v48, v40, v40, s{t0}
    v_perm_b32 v49, v41, v40, s{t2}
    ds_write_b64 v15, v[48:49] offset:{32+512}
    v_mov_b32 v50, v48
    v_mov_b32 v51, v40
    ds_write_b64 v15, v[50:51] offset:{HOD+32+512}
    s_waitcnt lgkmcnt(5)
    v_perm_b32 v52, v42, v42, s{t0}
    v_mov_b32 v53, v42
    v_perm_b32 v54, v42, v42, s{t1}
    v_perm_b32 v55, v43, v43, s{t0}
    ds_write_b128 v28, v[52:55] offset:{32+1024}
    v_mov_b32 v56, v52
    v_mov_b32 v57, v52
    v_mov_b32 v58, v54
    v_perm_b32 v59, v43, v42, s{t2}
    ds_write_b128 v28, v[56:59] offset:{HOD+32+1024}
    s_waitcnt lgkmcnt(6)
    v_perm_b32 v60, v44, v44, s{t0}
    v_perm_b32 v63, v44, v44, s{t1}
    v_perm_b32 v67, v45, v45, s{t0}
    v_mov_b32 v61, v60
    v_mov_b32 v62, v44
    v_mov_b32 v64, v63
    v_mov_b32 v65, v63
    v_mov_b32 v66, v67
    ds_write_b128 v29, v[60:63] offset:{32+2048}
    ds_write_b128 v29, v[64:67] offset:{32+2064}
    v_mov_b32 v68, v60
    v_mov_b32 v69, v60
    v_mov_b32 v70, v60
    v_mov_b32 v71, v63
    v_mov_b32 v72, v63
    v_mov_b32 v73, v63
    v_perm_b32 v74, v45, v44, s{t2}
    v_mov_b32 v75, v67
    ds_write_b128 v29, v[68:71] offset:{HOD+32+2048}
    ds_write_b128 v29, v[72:75] offset:{HOD+32+2064}
    s_waitcnt lgkmcnt(8)
    v_alignbit_b32 v76, v46, v39, 16
    v_alignbit_b32 v77, v47, v46, 16
    ds_write_b64 v15, v[76:77] offset:{HOD+32}
    s_mov_b32 exec_lo, 0
    s_mov_b32 exec_hi, 0x80000000
    ds_write_b16_d16_hi v15, v47 offset:{HOD+32+8}
    s_mov_b64 exec, -1""")

def hstage(a):
    HR = [128, 160, 192]
    a(f"""    v_lshlrev_b32 v12, 4, v{vL}
    v_subrev_u32 v13, 4, v12""")
    for c, R in enumerate((R1, R2, R3)):
        a(f"""    s_lshl_b32 s{t0}, s{sE if c == 2 else sCH}, 12
    s_add_u32 s{t0}, s{t0}, {4096 if c == 1 else 0}
    s_add_u32 s{R}, s{P['ssmk']}, s{t0}
    s_addc_u32 s{R+1}, s{P['ssmk']+1}, 0
    s_mov_b32 s{R+2}, 4096
    s_mov_b32 s{R+3}, 0x00020000""")
        for j in range(4):
            a(f"    buffer_load_dwordx4 v[{HR[c]+4*j}:{HR[c]+4*j+3}], v12, s[{R}:{R+3}], 0 offen offset:{1024*j}")
            if j == 0:
                a(f"    buffer_load_dword v{HR[c]+16}, v13, s[{R}:{R+3}], 0 offen")
            else:
                a(f"    buffer_load_dword v{HR[c]+16+j}, v12, s[{R}:{R+3}], 0 offen offset:{1024*j-4}")
    return HR

def hstore(a, HR, younger):
    a(f"    v_add_u32 v14, {H0}, v12")
    for c in range(3):
        hb = HSZ * (4 if c == 2 else c)
        a(f"    s_waitcnt vmcnt({16 - 8*c + younger})")
        for j in range(4):
            r = HR[c] + 4 * j; o = 32 + 4 * j
            a(f"""    v_alignbit_b32 v{o}, v{r}, v{HR[c]+16+j}, 16
    v_alignbit_b32 v{o+1}, v{r+1}, v{r}, 16
    v_alignbit_b32 v{o+2}, v{r+2}, v{r+1}, 16
    v_alignbit_b32 v{o+3}, v{r+3}, v{r+2}, 16""")
        for j in range(4):
            r = HR[c] + 4 * j; o = 32 + 4 * j
            a(f"""    ds_write_b128 v14, v[{r}:{r+3}] offset:{hb + 32 + 1024*j}
    ds_write_b128 v14, v[{o}:{o+3}] offset:{hb + HOD + 32 + 1024*j}""")

AB = [16, 17, 18, 19]; BB = 20; DOP = 24; ACC = 64; S = [128, 192]

def setup_addr(a):
    a(f"""    v_lshrrev_b32 v6, 1, v{vN}
    v_lshlrev_b32 v7, 2, v{vG}
    v_sub_u32 v6, v6, v7
    v_add_u32 v6, 13, v6
    v_lshlrev_b32 v6, 2, v6
    v_and_b32 v7, 1, v{vN}
    v_xor_b32 v7, 1, v7
    v_mul_u32_u24 v7, {HOD}, v7
    v_add3_u32 v{AB[0]}, v6, v7, s{sH}
    v_add_u32 v{AB[1]}, 1024, v{AB[0]}
    v_add_u32 v{AB[2]}, 2048, v{AB[0]}
    v_add_u32 v{AB[3]}, 3072, v{AB[0]}
    v_lshl_add_u32 v6, v{vN}, 1, v{vG}
    v_lshl_add_u32 v6, v6, 4, s{sXB}
    v_add_u32 v{BB}, 32, v6
    v_lshrrev_b32 v6, 3, v{vN}
    v_add_u32 v6, 2, v6
    v_and_b32 v7, 7, v{vN}
    v_xor_b32 v7, 7, v7
    v_and_b32 v23, 1, v7
    v_lshlrev_b32 v23, 4, v23
    v_lshrrev_b32 v7, 1, v7
    v_lshl_add_u32 v6, v6, 2, v7
    v_lshlrev_b32 v7, 2, v{vG}
    v_sub_u32 v22, v6, v7
    v_lshrrev_b32 v6, 1, v{vN}
    v_and_b32 v6, 3, v6
    v_xor_b32 v6, v6, v{vG}
    v_lshl_add_u32 v6, v{vN}, 2, v6
    v_lshl_add_u32 v21, v6, 4, s{sH}""")

def setup_diag(a):
    a(f"""    s_and_b32 s{t0}, s{sCH}, 1
    s_lshl_b32 s{t0}, s{t0}, 4
    s_lshr_b32 s{sD}, s{sD}, s{t0}
    s_and_b32 s{sD}, s{sD}, 0xffff
    v_lshlrev_b32 v23, v23, s{sD}
    v_cmp_eq_u32 vcc, 0, v22
    v_cmp_eq_u32 s[{t0}:{t1}], 1, v22
    v_cmp_eq_u32 s[{t2}:{t3}], 2, v22
    v_cndmask_b32 v{DOP}, 0, v23, vcc
    v_cmp_eq_u32 vcc, 3, v22
    v_cndmask_b32 v{DOP+1}, 0, v23, s[{t0}:{t1}]
    v_cndmask_b32 v{DOP+2}, 0, v23, s[{t2}:{t3}]
    v_cndmask_b32 v{DOP+3}, 0, v23, vcc""")

def a_reads(u0, st_):
    l = []
    for al in range(8):
        o = (al & 1) * 128 + 16 * u0
        r = S[st_] + 4 * al
        l.append(f"    ds_read2_b32 v[{r}:{r+1}], v{AB[al//2]} offset0:{o} offset1:{o+1}")
        l.append(f"    ds_read2_b32 v[{r+2}:{r+3}], v{AB[al//2]} offset0:{o+2} offset1:{o+3}")
    return l
def b_reads(u0, st_):
    return [f"    ds_read_b128 v[{S[st_]+32+4*be}:{S[st_]+32+4*be+3}], v{BB} offset:{512*be + 64*(7-u0)}" for be in range(8)]

def mf(d, x, y, c=None):
    cc = "0" if c == 0 else f"v[{d}:{d+3}]"
    return f"    v_mfma_f32_16x16x32_bf16 v[{d}:{d+3}], v[{x}:{x+3}], v[{y}:{y+3}], {cc}"

def conv_main(a):
    vD = 21
    for l in b_reads(0, 0): a(l)
    for u0 in range(8):
        s_ = u0 % 2
        m = []
        if u0 == 0:
            for I in range(8): m.append((mf(ACC + 4 * I, DOP, S[s_] + 32 + 4 * I, 0), None))
        for I in range(8):
            for al in range(I + 1):
                m.append((mf(ACC + 4 * I, S[s_] + 4 * al, S[s_] + 32 + 4 * (I - al)), I if al == I else None))
        a("    s_waitcnt lgkmcnt(0)")
        if u0 < 7:
            ar, br = a_reads(u0 + 1, 1 - s_), b_reads(u0 + 1, 1 - s_)
            rd = []
            for i in range(8): rd += [br[i], ar[2 * i], ar[2 * i + 1]]
            for i, (x, _) in enumerate(m):
                a(x)
                if i < len(rd): a(rd[i])
        else:
            pend = []
            for i, (x, done) in enumerate(m):
                a(x)
                if done is not None: pend.append((done, i))
                if pend and i - pend[0][1] >= 8:
                    I = pend.pop(0)[0]
                    a(f"    ds_write_b128 v{vD}, v[{ACC+4*I}:{ACC+4*I+3}] offset:{1024*I}")
            for I, _ in pend:
                a(f"    ds_write_b128 v{vD}, v[{ACC+4*I}:{ACC+4*I+3}] offset:{1024*I}")

def quarter(a):
    LO, HI = 64, 68
    vA, vBL, vBH = AB[0], 21, 22
    a(f"""    s_and_b32 s{t2}, s{sJ}, 3
    s_lshl_b32 s{t0}, s{t2}, 9
    v_add_u32 v{vBL}, s{t0}, v{BB}
    s_sub_u32 s{t0}, 3584, s{t0}
    v_add_u32 v{vBH}, s{t0}, v{BB}
    s_add_u32 s{t3}, s{t2}, 1
    s_lshl_b32 s{t4}, s{t2}, 1
    s_sub_u32 s{t4}, 7, s{t4}""")
    D = 4
    RA = lambda i: 128 + 12 * (i % 8)
    def reads(i, lo):
        r = RA(i); k = i % 8
        pre = ""
        l = [f"    ds_read2_b32 v[{r}:{r+1}], v{vA} offset0:{16*k} offset1:{16*k+1}",
             f"    ds_read2_b32 v[{r+2}:{r+3}], v{vA} offset0:{16*k+2} offset1:{16*k+3}",
             f"    ds_read_b128 v[{r+4}:{r+7}], v{vBH} offset:{64*(7-k)}"]
        if lo: l.append(f"    ds_read_b128 v[{r+8}:{r+11}], v{vBL} offset:{64*(7-k)}")
        return l
    def adv():
        a(f"    v_add_u32 v{vA}, 512, v{vA}\n    v_subrev_u32 v{vBH}, 512, v{vBH}\n    v_subrev_u32 v{vBL}, 512, v{vBL}")
    D1 = 3
    for i in range(D1):
        for l in reads(i, True): a(l)
    a(f"    s_waitcnt lgkmcnt({4*(D1-1)})")
    a(mf(HI, DOP, RA(0) + 4, 0)); a(mf(LO, DOP, RA(0) + 8, 0))
    a("L_q1:")
    for i in range(8):
        if i + D1 == 8: adv()
        a(f"    s_waitcnt lgkmcnt({4*(D1-1)})")
        a(mf(HI, RA(i), RA(i) + 4)); a(mf(LO, RA(i), RA(i) + 8))
        for l in reads(i + D1, True): a(l)
    a(f"""    s_sub_u32 s{t3}, s{t3}, 1
    s_cmp_lg_u32 s{t3}, 0
    s_cbranch_scc1 L_q1""")
    for l in reads(3, False): a(l)
    a("    s_waitcnt lgkmcnt(3)\nL_q2:")
    for i in range(8):
        if i + D == 8: adv()
        a(f"    s_waitcnt lgkmcnt({3*(D-1)})")
        a(mf(HI, RA(i), RA(i) + 4))
        for l in reads(i + D, False): a(l)
    a(f"""    s_sub_u32 s{t4}, s{t4}, 1
    s_cmp_lg_u32 s{t4}, 0
    s_cbranch_scc1 L_q2
    s_waitcnt lgkmcnt(0)""")

def unpack4(a, d, e0):
    a(f"""    v_and_b32 v{d}, s{sHI}, v{e0+1}
    v_lshlrev_b32 v{d+1}, 16, v{e0+1}
    v_and_b32 v{d+2}, s{sHI}, v{e0}
    v_lshlrev_b32 v{d+3}, 16, v{e0}""")

def mix4(a, q, A_, B_, g):
    for h in (0, 2):
        a(f"    v_pk_fma_f32 v[{q+h}:{q+h+1}], v[{q+h}:{q+h+1}], v[{A_+h}:{A_+h+1}], v[{B_+h}:{B_+h+1}] neg_lo:[0,0,1] neg_hi:[0,0,1]")
    for h in (0, 2):
        a(f"    v_pk_fma_f32 v[{q+h}:{q+h+1}], v[{q+h}:{q+h+1}], v[{g+h}:{g+h+1}], v[{B_+h}:{B_+h+1}]")

def kernel(a):
    k = NAME + "_kernel"
    a(kstart(k))
    st(a, 0)
    a("    s_cmp_ge_u32 s2, 256\n    s_cbranch_scc1 L_end")
    load_kernargs(a)
    a(f"""    v_lshrrev_b32 v1, 6, v0
    v_and_b32 v{vL}, 63, v0
    v_readfirstlane_b32 s{sW}, v1
    s_getpc_b64 s[{t0}:{t1}]
L_pc:
    v_lshlrev_b32 v6, 7, v0
    v_cmp_gt_u32 vcc, L_end-L_pc, v6
    s_and_saveexec_b64 s[{t2}:{t3}], vcc
    s_cbranch_execz L_nopf
    global_load_dword v255, v6, s[{t0}:{t1}]
L_nopf:
    s_mov_b64 exec, -1
    v_and_b32 v{vN}, 15, v{vL}
    v_lshrrev_b32 v{vG}, 4, v{vL}
    v_mov_b32 v{vMISC}, {MISC}
    s_and_b32 s{sX}, s2, 7
    s_lshr_b32 s{sJ}, s2, 3
    s_getreg_b32 s{sTF}, hwreg(HW_REG_XCC_ID, 0, 4)
    s_mov_b32 s{sHI}, 0xffff0000
    s_movk_i32 s{t5}, {4*ROW}
    s_lshl_b32 s{t0}, s{sX}, 6
    s_lshl_b32 s{t1}, s{sJ}, 1
    s_add_u32 s{t0}, s{t0}, s{t1}
    s_and_b32 s{t1}, s{sW}, 1
    s_add_u32 s{t0}, s{t0}, s{t1}
    s_lshl_b32 s{sE}, s{sX}, 3
    s_lshr_b32 s{t3}, s{sJ}, 2
    s_add_u32 s{sE}, s{sE}, s{t3}
    s_add_u32 s{sE}, s{sE}, 512
    s_sub_u32 s{t2}, s{sW}, 2
    s_cmp_ge_u32 s{sW}, 4
    s_cselect_b32 s{sCH}, s{sE}, s{t0}
    s_cselect_b32 s{t0}, s{t2}, s{sW}
    s_mul_i32 s{sH}, s{t0}, {HSZ}
    s_add_u32 s{sH}, s{sH}, {H0}
    s_mul_i32 s{sXB}, s{t0}, {XSZ}
    s_add_u32 s{sXB}, s{sXB}, {X0}
    s_lshr_b32 s{t4}, 0x8c, s{sW}
    s_and_b32 s{t4}, s{t4}, 1
    s_sub_u32 s{sKG}, s{sW}, 1
    s_mul_i32 s{sKG}, s{sKG}, {KSZ}
    s_cmp_eq_u32 s{sW}, 1
    s_cselect_b32 s{sKH}, {H0 + 5*HSZ}, s{sH}
    s_cmp_ge_u32 s{sW}, 4
    s_cbranch_scc1 L_nopad""")
    zero_pads(a)
    a(f"""L_nopad:
    s_lshl_b32 s{t0}, s{sCH}, 1
    s_and_b32 s{t0}, s{t0}, -4
    s_mov_b32 s{t1}, {NONCE_OFF}
    s_waitcnt lgkmcnt(0)
    s_barrier
    s_load_dword s{sT}, {sp('ws')}, s{t1}
    s_cmp_eq_u32 s{t4}, 1
    s_cselect_b32 s{t2}, s{P['dskip']}, s{P['ssmD']}
    s_cselect_b32 s{t3}, s{P['dskip']+1}, s{P['ssmD']+1}
    s_load_dword s{sD}, s[{t2}:{t3}], s{t0}""")
    srd(a, WS, P['ws'], WS_SIZE)
    a(f"""    s_cmp_ge_u32 s{sW}, 4
    s_cbranch_scc1 L_aux
    s_cmp_eq_u32 s{sW}, 0
    s_cbranch_scc1 L_nopar""")
    param_loads(a)
    a("L_nopar:")
    setup_addr(a)
    nonce_ready(a)
    setup_diag(a)
    st(a, 1)
    a(f"""    s_cmp_lg_u32 s{sW}, 0
    s_cbranch_scc1 L_kgen""")
    spin(a, M_CNT0, 8, "L_c0")
    HR = hstage(a)
    a(f"""    s_lshl_b32 s{t5}, s{sX}, 19
    s_lshl_b32 s{t1}, s{sJ}, 14
    s_add_u32 s{t5}, s{t5}, s{t1}
    s_add_u32 s{t1}, s{t5}, 8192
    v_lshlrev_b32 v6, 7, v{vL}
    buffer_load_dword v254, v6, s[{WS}:{WS+3}], s{t5} offen sc1
    buffer_load_dword v253, v6, s[{WS}:{WS+3}], s{t1} offen sc1
    s_lshl_b32 s{t0}, s{sX}, 10
    s_lshr_b32 s{t1}, s{sJ}, 4
    s_lshl_b32 s{t1}, s{t1}, 8
    s_add_u32 s{t0}, s{t0}, s{t1}
    s_add_u32 s{t0}, s{t0}, {F1_OFF}
    v_lshl_add_u32 v10, v{vL}, 2, s{t0}
    buffer_load_dword v252, v10, s[{WS}:{WS+3}], 0 offen sc1
    s_lshl_b32 s{t0}, s{sX}, 7
    s_add_u32 s{t0}, s{t0}, {S1_OFF}
    v_lshrrev_b32 v11, 1, v{vL}
    v_lshl_add_u32 v11, v11, 2, s{t0}
    s_lshl_b32 s{t4}, s{sJ}, 2
    s_add_u32 s{t4}, s{t4}, s{t0}""")
    hstore(a, HR, 3)
    st(a, 2)
    poll(a, "L_h1", 10, 11, t4, M_CNT1, 4)
    for arr in range(4):
        a(f"    s_mov_b32 m0, {X0 + arr*XSZ + 512}")
        for j in range(4):
            a(f"    buffer_load_dwordx4 v12, s[{WS}:{WS+3}], s{t5} offen offset:{1024*j} sc1 lds")
        if arr < 3: a(f"    s_add_u32 s{t5}, s{t5}, 4096")
    for l in a_reads(0, 0)[:12]: a(l)
    a("    s_waitcnt lgkmcnt(4)")
    for l in a_reads(0, 0)[12:]: a(l)
    a("    s_waitcnt vmcnt(0)")
    signal(a, M_XRDY)
    a("    s_branch L_conv")
    kgen(a)
    st(a, 2)
    a(f"""    s_cmp_lg_u32 s{sW}, 1
    s_cbranch_scc1 L_xpre""")
    signal(a, M_KE)
    spin(a, M_XRDY, 1, "L_xw1")
    a("L_xpre:")
    for l in a_reads(0, 0)[:12]: a(l)
    a("    s_waitcnt lgkmcnt(4)")
    for l in a_reads(0, 0)[12:]: a(l)
    spin(a, M_XRDY, 1, "L_xwait")
    a("L_conv:")
    st(a, 3)
    conv_main(a)
    st(a, 4)
    a(f"""L_mix:
    s_lshr_b32 s{t0}, s{sJ}, 2
    v_xor_b32 v10, s{t0}, v{vL}
    v_lshrrev_b32 v11, 3, v10
    v_and_b32 v11, 3, v11
    v_xor_b32 v11, v11, v10
    s_lshl_b32 s{t1}, s{sW}, 10
    s_add_u32 s{t1}, s{t1}, {H0}
    v_lshl_add_u32 v11, v11, 4, s{t1}
    v_xor_b32 v10, 1, v10
    s_lshl_b32 s{t1}, s{sW}, 9
    s_add_u32 s{t1}, s{t1}, {X0 + 2*XSZ + 512}
    v_lshl_add_u32 v10, v10, 3, s{t1}
    s_lshl_b32 s{t1}, s{sW}, 8
    s_lshl_b32 s{t2}, s{sJ}, 1
    s_add_u32 s{t1}, s{t1}, s{t2}
    s_mul_i32 s{t1}, s{t1}, {ROW}
    s_lshl_b32 s{t2}, s{sX}, 7
    s_add_u32 s{t1}, s{t1}, s{t2}
    v_lshlrev_b32 v12, 6, v{vG}
    v_bfe_u32 v13, v{vL}, 3, 1
    v_add_u32 v12, v12, v13
    v_mul_u32_u24 v12, {ROW}, v12
    v_and_b32 v13, 7, v{vL}
    v_lshl_add_u32 v12, v13, 4, v12
    v_add_u32 v12, s{t1}, v12""")
    srd(a, R1, P['out'], NBYTES)
    a(f"""    s_lshl_b32 s{t4}, s{sX}, 10
    s_lshl_b32 s{t2}, s{sW}, 7
    s_add_u32 s{t4}, s{t4}, s{t2}
    s_lshl_b32 s{t2}, s{sJ}, 2
    s_add_u32 s{t4}, s{t4}, s{t2}
    s_add_u32 s{t4}, s{t4}, {F2_OFF}
    s_waitcnt lgkmcnt(0)
    s_barrier
    ds_read_b64 v[32:33], v10
    ds_read_b64 v[34:35], v10 offset:{XSZ}
    ds_read_b64 v[36:37], v10 offset:{G0 - (X0 + 2*XSZ + 512)}
    ds_read_b128 v[40:43], v11
    ds_read_b128 v[44:47], v11 offset:{2*HSZ}
    ds_read_b128 v[48:51], v11 offset:{HSZ}
    ds_read_b128 v[52:55], v11 offset:{3*HSZ}
    s_waitcnt lgkmcnt(4)""")
    unpack4(a, 56, 32); unpack4(a, 60, 34); unpack4(a, 28, 36)
    a("    s_waitcnt lgkmcnt(2)")
    mix4(a, 56, 40, 44, 28)
    a("    s_waitcnt lgkmcnt(0)")
    mix4(a, 60, 48, 52, 28)
    for i in range(4): a(f"    v_cvt_pk_bf16_f32 v{32+i}, v{56+i}, v{60+i}")
    a(f"    buffer_store_dwordx4 v[32:35], v12, s[{R1}:{R1+3}], 0 offen")
    publish(a, t4, M_CNT2)
    st(a, 5)
    a(f"""    s_mul_i32 s{t5}, s{sJ}, {64*ROW}
    s_lshl_b32 s{t2}, s{sX}, 7
    s_add_u32 s{t5}, s{t5}, s{t2}
    v_lshrrev_b32 v14, 3, v{vL}
    v_mul_u32_u24 v12, {ROW}, v14
    v_lshl_add_u32 v12, v13, 4, v12
    s_cmp_lg_u32 s{sW}, 0
    s_cbranch_scc1 L_t2
    s_lshl_b32 s{t0}, s{sX}, 10
    s_lshr_b32 s{t1}, s{sJ}, 2
    s_lshl_b32 s{t1}, s{t1}, 7
    s_add_u32 s{t0}, s{t0}, s{t1}
    s_add_u32 s{t0}, s{t0}, {F2_OFF}
    v_and_b32 v11, 31, v{vL}
    v_lshl_add_u32 v10, v11, 2, s{t0}
    s_lshl_b32 s{t0}, s{sX}, 7
    s_add_u32 s{t0}, s{t0}, {S2_OFF}
    v_lshl_add_u32 v11, v11, 2, s{t0}
    s_lshl_b32 s{t4}, s{sJ}, 2
    s_add_u32 s{t4}, s{t4}, s{t0}""")
    poll(a, "L_h2", 10, 11, t4, M_CNT2, 8)
    a(f"    s_mov_b32 s{t0}, s{t5}")
    for j in range(8):
        a(f"""    s_mov_b32 m0, {T2 + 1024*j}
    buffer_load_dwordx4 v12, s[{R1}:{R1+3}], s{t0} offen sc1 lds""")
        if j < 7: a(f"    s_add_u32 s{t0}, s{t0}, {8*ROW}")
    a(f"""L_t2:
    s_mul_i32 s{t0}, s{sW}, {8*ROW}
    s_add_u32 s{t5}, s{t5}, s{t0}
    s_lshl_b32 s{t0}, s{sW}, 1
    v_lshrrev_b32 v15, 2, v14
    v_add_u32 v15, s{t0}, v15
    v_xor_b32 v15, v15, v13
    v_lshlrev_b32 v15, 4, v15
    v_and_b32 v14, 3, v14
    v_lshl_add_u32 v15, v14, 2, v15
    v_lshl_add_u32 v15, v13, 10, v15
    v_add_u32 v15, {T2}, v15
    s_waitcnt vmcnt(0)
    s_barrier""")
    st(a, 6)
    a(f"""    ds_read2st64_b32 v[32:33], v15 offset0:0 offset1:1
    ds_read2st64_b32 v[34:35], v15 offset0:2 offset1:3
    s_waitcnt lgkmcnt(0)
    buffer_store_dwordx4 v[32:35], v12, s[{R1}:{R1+3}], s{t5} offen {OPT.get('fin', '')}""")
    if STAMPS:
        a("    s_waitcnt vmcnt(0)")
        st(a, 7)
        a(f"    s_mul_i32 s75, s2, 8\n    s_add_u32 s75, s75, s{sW}\n    v_and_b32 v0, 63, v0")
        stamps_out(a, 8, P['ws'], wg="s75", vt=120)
    a("    s_endpgm")
    a(f"""L_aux:
    s_setprio 2
    s_and_b32 s{t0}, s{sW}, 1
    s_bfe_u32 s{t1}, s{sW}, 0x10001
    s_lshl_b32 s{t2}, s{sJ}, 6
    s_lshl_b32 s{t3}, s{t1}, 5
    s_add_u32 s{t2}, s{t2}, s{t3}
    s_mul_i32 s{t2}, s{t2}, {ROW}
    s_lshl_b32 s{t3}, s{sX}, 7
    s_lshl_b32 s{t4}, s{t0}, 6
    s_add_u32 s{t3}, s{t3}, s{t4}
    s_add_u32 s{t2}, s{t2}, s{t3}
    v_mul_u32_u24 v10, {8*ROW}, v{vG}
    v_lshl_add_u32 v10, v{vN}, 2, v10
    v_add_u32 v10, s{t2}, v10
    v_subrev_u32 v11, {3*ROW}, v10
    s_lshl_b32 s{t3}, s{t3}, 2
    v_lshl_add_u32 v12, v{vN}, 4, s{t3}""")
    srd(a, R1, P['k'], NBYTES); srd(a, R2, P['v'], NBYTES); srd(a, R3, P['q'], NBYTES); srd(a, R4, P['shift'], 4608)
    a(f"""    s_cmp_lg_u32 s{sW}, 4
    s_cbranch_scc1 L_noer
    s_mul_i32 s{t2}, s2, {8*ROW}
    v_lshlrev_b32 v13, 2, v{vL}
    v_add_u32 v13, 1024, v13
    v_lshlrev_b32 v15, 2, v13
    v_add_u32 v13, s{t2}, v13
    v_subrev_u32 v14, {3*ROW}, v13
    v_mov_b32 v6, 0x80000000
    v_cmp_gt_u32 vcc, 32, v{vL}
    v_cndmask_b32 v13, v6, v13, vcc
    v_cndmask_b32 v14, v6, v14, vcc""")
    p1_loads(a, 13, 14, 15, 128)
    a("L_noer:")
    p1_loads(a, 10, 11, 12)
    a(f"""    ; shuffle buffer addresses (v13 write, v14 read) and hand-off address (v15)
    s_lshl_b32 s{t2}, s{sW}, 12
    s_add_u32 s{t2}, s{t2}, {SH0 - 4*4096}
    v_lshrrev_b32 v6, 1, v{vN}
    v_and_b32 v6, 3, v6
    v_xor_b32 v6, v6, v{vG}
    v_lshl_add_u32 v6, v{vN}, 2, v6
    v_lshl_add_u32 v13, v6, 4, s{t2}
    v_lshrrev_b32 v6, 3, v{vL}
    v_and_b32 v6, 3, v6
    v_xor_b32 v6, v6, v{vL}
    v_lshl_add_u32 v14, v6, 4, s{t2}
    s_lshl_b32 s{t2}, s{sX}, 19
    s_lshl_b32 s{t3}, s{t0}, 18
    s_add_u32 s{t2}, s{t2}, s{t3}
    s_lshl_b32 s{t3}, s{sJ}, 7
    s_add_u32 s{t2}, s{t2}, s{t3}
    s_lshl_b32 s{t3}, s{t1}, 6
    s_add_u32 s{t2}, s{t2}, s{t3}
    v_lshrrev_b32 v6, 2, v{vL}
    v_lshlrev_b32 v6, 14, v6
    v_and_b32 v7, 3, v{vL}
    v_lshl_add_u32 v6, v7, 4, v6
    v_add_u32 v15, s{t2}, v6
    s_lshl_b32 s{t4}, s{sX}, 10
    s_lshl_b32 s{t3}, s{t0}, 8
    s_add_u32 s{t4}, s{t4}, s{t3}
    s_lshl_b32 s{t3}, s{sJ}, 3
    s_add_u32 s{t4}, s{t4}, s{t3}
    s_lshl_b32 s{t3}, s{t1}, 2
    s_add_u32 s{t4}, s{t4}, s{t3}
    s_add_u32 s{t4}, s{t4}, {F1_OFF}""")
    nonce_ready(a)
    st(a, 1)
    g4 = lambda i: [GR + 4 * i + m for m in range(4)]
    def after_kv():
        a(f"""    ds_write_b128 v13, v[{GR}:{GR+3}]
    ds_write_b128 v13, v[{GR+4}:{GR+7}] offset:1024
    ds_read_b128 v[112:115], v14
    ds_read_b128 v[116:119], v14 offset:1024""")
    p1_compute(a, [g4(0), g4(1)], [g4(2), g4(3)], after_kv)
    a(f"""    ds_write_b128 v13, v[{GR+8}:{GR+11}] offset:2048
    ds_write_b128 v13, v[{GR+12}:{GR+15}] offset:3072
    ds_read_b128 v[120:123], v14 offset:2048
    ds_read_b128 v[124:127], v14 offset:3072
    s_movk_i32 s{t0}, 4096
    s_movk_i32 s{t1}, 8192
    s_movk_i32 s{t2}, 12288
    s_waitcnt lgkmcnt(4)
    buffer_store_dwordx4 v[112:115], v15, s[{WS}:{WS+3}], 0 offen
    buffer_store_dwordx4 v[116:119], v15, s[{WS}:{WS+3}], s{t0} offen
    s_waitcnt lgkmcnt(0)
    buffer_store_dwordx4 v[120:123], v15, s[{WS}:{WS+3}], s{t1} offen
    buffer_store_dwordx4 v[124:127], v15, s[{WS}:{WS+3}], s{t2} offen""")
    if OPT.get("s2") != "pub": st(a, 2)
    publish(a, t4, M_CNT1)
    if OPT.get("s2") == "pub": st(a, 2)
    a(f"""    s_cmp_ge_u32 s{sW}, 6
    s_cbranch_scc1 L_extra
    s_cmp_eq_u32 s{sW}, 5
    s_cbranch_scc1 L_recv""")
    SG = 208
    seg = lambda h, gi: SG + 16 * h + 4 * gi
    p1_compute(a, [[seg(h, 2), seg(h, 2) + 1, seg(h, 3), seg(h, 3) + 1] for h in range(2)],
               [[seg(h, 0), seg(h, 0) + 1, seg(h, 1), seg(h, 1) + 1] for h in range(2)], None, 1, 128)
    for h in range(2):
        for gi in range(4): a(f"    v_mov_b32 v{seg(h, gi)+2}, 0\n    v_mov_b32 v{seg(h, gi)+3}, s{sT}")
    a(f"""    v_and_b32 v7, 7, v{vL}
    v_and_b32 v8, 31, v{vL}
    v_lshlrev_b32 v8, 7, v8
    v_lshl_add_u32 v8, v7, 4, v8
    v_add_u32 v8, {SH0}, v8""")
    for i in range(8): a(f"    v_xor_b32 v{16+i}, {16*i}, v8")
    a("    s_mov_b32 exec_hi, 0")
    for i in range(8): a(f"    ds_write_b128 v{16+i}, v[{SG+4*i}:{SG+4*i+3}]")
    a(f"""    s_mov_b64 exec, -1
    v_lshrrev_b32 v9, 3, v{vL}
    v_xor_b32 v8, v9, v7
    v_lshlrev_b32 v8, 4, v8
    v_lshl_add_u32 v8, v9, 7, v8
    v_add_u32 v8, {SH0}, v8""")
    for i in range(4):
        a(f"    ds_read_b128 v[{128+4*i}:{131+4*i}], v8 offset:{1024*i}")
    QG, GW = 144, 180
    a(f"""    v_lshlrev_b32 v10, 15, v9
    v_lshl_add_u32 v10, v7, 4, v10
    s_mul_i32 s{t2}, s2, {8*ROW}
    v_mul_u32_u24 v11, {ROW}, v9
    v_lshlrev_b32 v12, 4, v7
    v_add3_u32 v11, v11, v12, s{t2}
    s_lshl_b32 s{t1}, s2, 7
    s_add_u32 s{t1}, s{t1}, {XE_OFF}""")
    spin(a, M_XRDY, 1, "L_x4", 1)
    for i in range(4):
        a(f"""    buffer_store_dwordx4 v[{128+4*i}:{131+4*i}], v10, s[{WS}:{WS+3}], s{t1} offen sc1
    s_add_u32 s{t1}, s{t1}, {8*32768}""")
    for i in range(9):
        a(f"    buffer_load_dwordx4 v[{QG+4*i}:{QG+4*i+3}], v11, s[{R3}:{R3+3}], 0 offen offset:{128*i}")
        a(f"    global_load_dwordx4 v[{GW+4*i}:{GW+4*i+3}], v12, {sp('gw')} offset:{128*i}")
    a("    s_waitcnt vmcnt(18)")
    signal(a, M_RDONE)
    st(a, 3)
    for i in range(9):
        a(f"    s_waitcnt vmcnt({16-2*i})")
        for m in range(4):
            c = "0" if i == 0 else f"v{16+m}"
            a(f"    v_dot2_f32_bf16 v{16+m}, v{QG+4*i+m}, v{GW+4*i+m}, {c}")
    a(f"""    v_xor_b32 v9, 7, v9
    v_lshl_add_u32 v9, v9, 1, v{vMISC}
    v_lshl_add_u32 v8, v{vL}, 3, v{vMISC}
    v_add_f32 v16, v16, v17
    v_add_f32 v18, v18, v19
    v_add_f32 v16, v16, v18
    v_add_f32 v17, v16, v16 row_half_mirror row_mask:0xf bank_mask:0xf
    v_add_f32 v16, v17, v17 quad_perm:[1,0,3,2] row_mask:0xf bank_mask:0xf
    v_add_f32 v17, v16, v16 quad_perm:[2,3,0,1] row_mask:0xf bank_mask:0xf
    v_mul_f32 v16, {f32(-LOG2E)}, v17
    v_exp_f32 v16, v16
    v_add_f32 v16, 1.0, v16
    v_rcp_f32 v16, v16
    v_cvt_pk_bf16_f32 v16, v16, v16
    ds_write_b16 v9, v16 offset:{M_GB}
    s_lshl_b32 s{t0}, s2, 5
    s_add_u32 s{t0}, s{t0}, {GT_OFF}
    v_lshlrev_b32 v10, 4, v{vL}
    v_mov_b32 v22, 0
    v_mov_b32 v23, s{sT}
    s_mov_b64 exec, 3
    ds_read_b64 v[20:21], v8 offset:{M_GB}
    s_waitcnt lgkmcnt(0)
    buffer_store_dwordx4 v[20:23], v10, s[{WS}:{WS+3}], s{t0} offen sc1
    s_mov_b64 exec, -1
    s_waitcnt vmcnt(0)""")
    signal(a, M_GDONE)
    st(a, 4)
    a("    s_branch L_mix")
    def receive(lab, n, vaddr, sbase, step, vlds, lstep):
        a(f"    s_mov_b32 s{t1}, 0\n{lab}:\n    s_mov_b32 s{t0}, s{sbase}")
        for i in range(n):
            a(f"    buffer_load_dwordx4 v[{128+4*i}:{131+4*i}], v{vaddr}, s[{WS}:{WS+3}], s{t0} offen offset:{step*(i%2)} sc1")
            if i % 2 == 1 and i < n - 1: a(f"    s_add_u32 s{t0}, s{t0}, {2*step}")
        a(f"    s_add_u32 s{t1}, s{t1}, 1\n    v_mov_b32 v17, 0\n    s_waitcnt vmcnt(0)")
        for i in range(n):
            a(f"    v_xor_b32 v18, s{sT}, v{131+4*i}\n    v_or_b32 v17, v17, v18")
        a(f"""    v_cmp_ne_u32 vcc, 0, v17
    s_cbranch_vccz {lab}_ok
    s_sleep 4
    s_cmp_lt_u32 s{t1}, {HARD//16}
    s_cbranch_scc1 {lab}
{lab}_ok:""")
        for i in range(n):
            a(f"    ds_write_b64 v{vlds}, v[{128+4*i}:{129+4*i}] offset:{lstep*i}")
        a("    s_waitcnt lgkmcnt(0)")
    a("L_recv:")
    srd(a, R1, P['out'], NBYTES)
    a(f"""    s_mul_i32 s{t2}, s{sJ}, {64*ROW}
    s_lshl_b32 s{t1}, s{sX}, 7
    s_add_u32 s{t2}, s{t2}, s{t1}
    v_mul_u32_u24 v9, {ROW}, v{vL}
    s_lshl_b32 s{t3}, s{sX}, 10
    s_add_u32 s{t3}, s{t3}, {F2_OFF}
    s_sub_u32 s{t0}, s{sE}, 512
    s_lshr_b32 s{t1}, s{t0}, 1
    s_lshl_b32 s{t1}, s{t1}, 15
    s_and_b32 s{t0}, s{t0}, 1
    s_lshl_b32 s{t0}, s{t0}, 6
    s_add_u32 s{t4}, s{t0}, s{t1}
    s_add_u32 s{t4}, s{t4}, {XE_OFF}
    s_mov_b32 s{t5}, {GT_OFF}
    v_lshrrev_b32 v7, 2, v{vL}
    v_and_b32 v8, 3, v{vL}
    v_lshlrev_b32 v10, 7, v7
    v_lshl_add_u32 v10, v8, 4, v10
    v_lshrrev_b32 v11, 1, v8
    v_mul_u32_u24 v11, {XSZ}, v11
    v_sub_u32 v11, {X0 + 5*XSZ + 512}, v11
    v_lshl_add_u32 v11, v7, 4, v11
    v_and_b32 v8, 1, v8
    v_lshl_add_u32 v11, v8, 3, v11
    v_lshlrev_b32 v12, 4, v{vL}
    v_lshlrev_b32 v13, 3, v{vL}
    v_add_u32 v13, {G0}, v13""")
    spin(a, M_RDONE, 1, "L_rwait", 1)
    receive("L_rx", 16, 10, t4, 2048, 11, 256)
    signal(a, M_ERDY)
    st(a, 3)
    a(f"""    buffer_load_dword v254, v9, s[{R1}:{R1+3}], s{t2} offen sc1
    buffer_load_dword v253, v12, s[{WS}:{WS+3}], s{t3} offen sc1""")
    spin(a, M_GDONE, 1, "L_gdw", 1)
    receive("L_rg", 8, 12, t5, 1024, 13, 512)
    signal(a, M_GRDY)
    st(a, 4)
    if OPT.get("wb", "1") == "1":
        a(f"""    s_cmp_lg_u32 s{sJ}, 0
    s_cbranch_scc1 L_mix
    buffer_wbl2 sc1""")
    a(f"""    s_cmp_lg_u32 s2, 0
    s_cbranch_scc1 L_mix
    v_mov_b32 v6, s{sT}
    v_mov_b32 v7, {NONCE_OFF}
    buffer_store_dword v6, v7, s[{WS}:{WS+3}], 0 offen
    s_branch L_mix""")
    a("L_extra:")
    setup_addr(a)
    setup_diag(a)
    spin(a, M_KE, 1, "L_kwait", 1)
    spin(a, M_ERDY, 1, "L_ewait", 1)
    st(a, 3)
    quarter(a)
    a(f"""    v_lshlrev_b32 v10, 4, v{vL}
    v_add_u32 v10, {SH0 + 3*4096}, v10
    s_cmp_eq_u32 s{sW}, 6
    s_cbranch_scc1 L_exa
    ds_write_b128 v10, v[64:67]
    ds_write_b128 v10, v[68:71] offset:1024
    s_waitcnt lgkmcnt(0)""")
    signal(a, M_EB)
    st(a, 4)
    a(f"""    s_branch L_mix
L_exa:
    s_and_b32 s{t2}, s{sJ}, 3
    s_sub_u32 s{t3}, 7, s{t2}
    v_lshl_add_u32 v11, v{vN}, 2, v{vG}
    v_xor_b32 v12, 1, v11
    v_lshlrev_b32 v12, 3, v12
    s_lshl_b32 s{t0}, s{t2}, 9
    s_add_u32 s{t0}, s{t0}, {X0 + 5*XSZ + 512}
    v_add_u32 v13, s{t0}, v12
    s_lshl_b32 s{t0}, s{t3}, 9
    s_add_u32 s{t0}, s{t0}, {X0 + 5*XSZ + 512}
    v_add_u32 v12, s{t0}, v12
""")
    spin(a, M_GRDY, 1, "L_gwait", 1)
    a(f"""    ds_read_b64 v[32:33], v13
    ds_read_b64 v[34:35], v13 offset:{G0 - (X0 + 5*XSZ + 512)}
    ds_read_b64 v[36:37], v12
    ds_read_b64 v[38:39], v12 offset:{G0 - (X0 + 5*XSZ + 512)}
    v_mul_u32_u24 v11, {4*ROW}, v11
    s_lshl_b32 s{t4}, s{sCH}, 1
    v_add_u32 v11, s{t4}, v11
    s_mul_i32 s{t2}, s{t2}, {256*ROW}
    s_mul_i32 s{t3}, s{t3}, {256*ROW}""")
    srd(a, R1, P['out'], NBYTES)
    spin(a, M_EB, 1, "L_bwait", 1)
    a("    ds_read_b128 v[40:43], v10\n    ds_read_b128 v[44:47], v10 offset:1024")
    unpack4(a, 48, 32); unpack4(a, 52, 34); unpack4(a, 56, 36); unpack4(a, 60, 38)
    a("    s_waitcnt lgkmcnt(0)")
    mix4(a, 48, 64, 40, 52); mix4(a, 56, 68, 44, 60)
    for t, (r, s_) in enumerate(((48, t2), (56, t3))):
        for h in range(2):
            d = 32 + 2 * t + h
            a(f"""    v_cvt_pk_bf16_f32 v{d}, v{r+2*h}, v{r+2*h+1}
    buffer_store_short v{d}, v11, s[{R1}:{R1+3}], s{s_} offen offset:{2*h*ROW}
    buffer_store_short_d16_hi v{d}, v11, s[{R1}:{R1+3}], s{s_} offen offset:{(2*h+1)*ROW}""")
    st(a, 4)
    a("    s_branch L_mix\nL_end:\n    s_endpgm")

def main(path):
    a = Asm(); b = Asm()
    kernel(b)
    lines, n = hz.fix(b.lines)
    k = NAME + "_kernel"
    a(header([(k, 256, 512, LDS_SIZE)])); a("\n".join(lines))
    a(rodata()); a(kdesc(k, 256, sgpr=100))
    open(path, "w").write(a.text())
    print("nops inserted:", n, "LDS", LDS_SIZE)

if __name__ == "__main__":
    main(sys.argv[1])
```

```python
import sys
sys.path.insert(0, "gen")
from parts import *
import hz

STAMPS = "--stamps" in sys.argv
OPT = {k[2:].split("=")[0]: (k.split("=")[1] if "=" in k else "1") for k in sys.argv[2:] if k.startswith("--")}
TMO = int(OPT.get("tmo", 256))
HARD = 400000
PFS = int(OPT.get('pfs', 2))
XP = OPT.get('xp', 'late')
PRE = int(OPT.get('preload', 0))

XE_OFF = 0x000000
GP_OFF = 0x100000
GT_OFF = 0x140000
FL_OFF = 0x148000
SL_OFF = 0x150000
NONCE_OFF = 0x158000
WS_SIZE = 0x160000
F1, FQ, F2, FR = 0, 512, 1024, 1536
KROW = 288
KTAB = 57 * KROW
KSZ = (KTAB + 1536 + 127) // 128 * 128
HSZ = 8320; HOD = 4160
H0 = 4 * KSZ
XSZ = 4608
X0 = H0 + 6 * HSZ
MISC = X0 + 6 * XSZ
SH0 = MISC + 256
LDS_SIZE = SH0 + 4 * 2048
T2 = H0
M_QRDY, M_CNTQ, M_CNT2, M_ROK, M_BCNT, M_ERDY, M_ECNT = 0, 8, 12, 16, 20, 24, 28
M_AD, M_GDONE, M_TRDY, M_QI, M_GE = 32, 48, 52, 56, 128
sX, sJ, sW = 38, 39, 3
WS = 40
sT, sTF, sE, sH, sXB, sKG, sKH, sHI = 44, 45, 46, 47, 48, 49, 50, 51
R1, R2, R3, R4 = 52, 56, 60, 64
t0, t1, t2, t3, t4, t5 = 68, 69, 70, 71, 72, 73
sFL = 74
OUT = 96
sDA, sDB = 16, 17
vL, vN, vG, vMISC = 2, 3, 4, 5
PAR = 240

def prio(a, key, p):
    if key in OPT.get("prio", "abcd"): a(f"    s_setprio {p}")

def st(a, j, grp="main"):
    if STAMPS and (OPT.get("grp", "main") == grp or j in (0, 7)): stamp(a, j)

def spin(a, off, val, lab, nap=0):
    a(f"{lab}:")
    if nap: a(f"    s_sleep {nap}")
    a(f"""    ds_read_b32 v6, v{vMISC} offset:{off}
    s_waitcnt lgkmcnt(0)
    v_readfirstlane_b32 s{t0}, v6
    s_cmp_lg_u32 s{t0}, {val}
    s_cbranch_scc1 {lab}""")

def signal(a, off):
    a(f"    v_mov_b32 v6, 1\n    ds_write_b32 v{vMISC}, v6 offset:{off}")

def count(a, off):
    a(f"""    v_mov_b32 v6, 1
    s_mov_b64 exec, 1
    ds_add_u32 v{vMISC}, v6 offset:{off}
    s_mov_b64 exec, -1""")

def poll(a, lab, vfa, wide, slot, cnt_off, cnt_val):
    a(f"""    s_mov_b32 s{t1}, 0
{lab}_p:
    buffer_load_dword v6, v{vfa}, s[{WS}:{WS+3}], s{sFL} offen sc1
    s_add_u32 s{t1}, s{t1}, 1
    s_waitcnt vmcnt(0)
    v_cmp_ne_u32 vcc, s{sTF}, v6
    s_cbranch_vccz {lab}_ok
    s_cmp_lt_u32 s{t1}, {TMO}
    s_cbranch_scc1 {lab}_p""")
    if cnt_off == "own":
        a(f"""    v_and_b32 v7, 1, v{vL}
    v_bfe_u32 v8, v{vL}, 1, 1
    v_lshlrev_b32 v7, 2, v7
    v_lshl_add_u32 v7, v8, 8, v7
    s_lshl_b32 s{t0}, s{sJ}, 3
    v_add_u32 v7, s{t0}, v7
{lab}_w:
    buffer_load_dword v6, v7, s[{WS}:{WS+3}], s{sFL} offen sc1
    s_waitcnt vmcnt(0)
    v_cmp_ne_u32 vcc, s{sTF}, v6
    s_cbranch_vccnz {lab}_w""")
    elif cnt_off is not None: spin(a, cnt_off, cnt_val, lab + "_w")
    a(f"""    buffer_wbl2 sc1
    s_lshl_b32 s{t0}, s{sX}, 9
    s_add_u32 s{t0}, s{t0}, {SL_OFF + 128*slot}
    s_lshl_b32 s{t2}, s{sJ}, 2
    v_mov_b32 v6, s{sT}
    v_mov_b32 v7, s{t2}
    {'v_lshrrev_b32 v8, 1, v%d' % vL if wide else 'v_and_b32 v8, 31, v%d' % vL}
    v_lshlrev_b32 v8, 2, v8
    s_waitcnt vmcnt(0)
    buffer_store_dword v6, v7, s[{WS}:{WS+3}], s{t0} offen sc1
{lab}_q:
    s_sleep 16
    buffer_load_dword v6, v{vfa}, s[{WS}:{WS+3}], s{sFL} offen sc1
    buffer_load_dword v7, v8, s[{WS}:{WS+3}], s{t0} offen sc1
    s_add_u32 s{t1}, s{t1}, 1
    s_waitcnt vmcnt(0)
    v_cmp_ne_u32 vcc, s{sTF}, v6
    v_cmp_ne_u32 s[{t2}:{t3}], s{sT}, v7
    s_nop 1
    s_and_b64 vcc, vcc, s[{t2}:{t3}]
    s_cbranch_vccz {lab}_r
    s_cmp_lt_u32 s{t1}, {HARD}
    s_cbranch_scc1 {lab}_q
{lab}_r:
    buffer_inv sc1
    s_waitcnt vmcnt(0)
{lab}_ok:""")

def publish(a, soff, imm, cnt_off, vm=0):
    a(f"""    v_mov_b32 v6, s{sTF}
    v_mov_b32 v7, s{soff}
    v_mov_b32 v8, 1
    s_mov_b64 exec, 1
    s_waitcnt vmcnt({vm})
    buffer_store_dword v6, v7, s[{WS}:{WS+3}], s{sFL} offen offset:{imm}""")
    if cnt_off is not None: a(f"    ds_add_u32 v{vMISC}, v8 offset:{cnt_off}")
    a("    s_mov_b64 exec, -1")

def nonce_ready(a):
    a(f"""    s_waitcnt lgkmcnt(0)
    s_add_u32 s{sT}, s{sT}, 0x9e3779b0
    s_and_b32 s{sT}, s{sT}, -16
    s_or_b32 s{sTF}, s{sTF}, s{sT}""")

K0, V0, Q0, W0, GWR = 28, 40, 48, 56, 39
WP, KP, AC, GR = 60, 68, 90, 108

def p1_loads(a, vrow, vhalo, vcol):
    a(f"""    v_lshlrev_b32 v6, 2, v{vcol}
    s_waitcnt lgkmcnt(0)
    global_load_dwordx4 v[{W0}:{W0+3}], v6, {sp('shift')}""")
    for j in range(3):
        a(f"    global_load_dword v{K0+j}, v{vhalo}, {sp('k')} offset:{j*ROW}")
    for (reg, p) in ((K0 + 3, 'k'), (V0, 'v'), (Q0, 'q')):
        if p == 'q':
            if OPT.get('drop', '1') == '1':
                a(f"    s_cmp_eq_u32 s{sW}, 0\n    s_cbranch_scc1 L_kp\n    s_setprio 0\nL_kp:")
            a(f"    global_load_dword v{GWR}, v{vcol}, {sp('gw')}")
        for r in range(8):
            a(f"    global_load_dword v{reg+r}, v{vrow}, {sp(p)} offset:{r*ROW - 4032}")

def p1_kv(a, kv, extra):
    a(f"    s_waitcnt vmcnt({28+extra})")
    for j in range(4):
        lo, hi = W0 + j // 2, W0 + 2 + j // 2
        if j % 2 == 0:
            a(f"    v_lshlrev_b32 v{WP+2*j}, 16, v{lo}\n    v_lshlrev_b32 v{WP+2*j+1}, 16, v{hi}")
        else:
            a(f"    v_and_b32 v{WP+2*j}, s{sHI}, v{lo}\n    v_and_b32 v{WP+2*j+1}, s{sHI}, v{hi}")
    a(f"    s_waitcnt vmcnt({17+extra})")
    st(a, 2, "pre")
    a(f"    v_cmp_gt_u32 vcc, {4032 + ROW}, v10")
    for i in range(3): a(f"    v_cndmask_b32 v{K0+i}, v{K0+i}, 0, vcc")
    for i in range(11):
        a(f"    v_lshlrev_b32 v{KP+2*i}, 16, v{K0+i}\n    v_and_b32 v{KP+2*i+1}, s{sHI}, v{K0+i}")
    a("    .p2align 3")
    for r in range(8):
        a(f"    v_pk_mul_f32 v[{AC+2*r}:{AC+2*r+1}], v[{KP+2*(r+3)}:{KP+2*(r+3)+1}], v[{WP}:{WP+1}]")
    for j in range(1, 4):
        for r in range(8):
            i = r + 3 - j
            a(f"    v_pk_fma_f32 v[{AC+2*r}:{AC+2*r+1}], v[{KP+2*i}:{KP+2*i+1}], v[{WP+2*j}:{WP+2*j+1}], v[{AC+2*r}:{AC+2*r+1}]")
    a(f"    s_waitcnt vmcnt({9+extra})")
    st(a, 3, "pre")
    for r in range(8):
        a(f"    v_lshlrev_b32 v{KP+2*r}, 16, v{V0+r}\n    v_and_b32 v{KP+2*r+1}, s{sHI}, v{V0+r}")
    a("    .p2align 3")
    for r in range(8):
        a(f"    v_pk_mul_f32 v[{AC+2*r}:{AC+2*r+1}], v[{AC+2*r}:{AC+2*r+1}], v[{KP+2*r}:{KP+2*r+1}]")
    for h in range(2):
        for m in range(4):
            a(f"    v_cvt_pk_bf16_f32 v{kv[h][m]}, v{AC+2*(7-2*m)+h}, v{AC+2*(6-2*m)+h}")

def p1_q(a, q):
    a(f"    s_mov_b32 s{t0}, 0x05040100\n    s_mov_b32 s{t1}, 0x07060302")
    for h in range(2):
        for m in range(4):
            a(f"    v_perm_b32 v{q[h][m]}, v{Q0+6-2*m}, v{Q0+7-2*m}, s{t0+h}")

def p1_gate(a, d):
    PR = KP
    for r in range(8):
        a(f"    v_dot2_f32_bf16 v{PR+r}, v{Q0+r}, v{GWR}, 0")
    for i in range(4):
        a(f"    v_add_f32 v{PR+8+i}, v{PR+i}, v{PR+i} row_ror:8 row_mask:0xf bank_mask:0x3")
    for i in range(4):
        a(f"    v_add_f32 v{PR+8+i}, v{PR+4+i}, v{PR+4+i} row_ror:8 row_mask:0xf bank_mask:0xc")
    for i in range(2):
        a(f"    v_add_f32 v{PR+i}, v{PR+8+i}, v{PR+8+i} row_shl:4 row_mask:0xf bank_mask:0x5")
    for i in range(2):
        a(f"    v_add_f32 v{PR+i}, v{PR+10+i}, v{PR+10+i} row_shr:4 row_mask:0xf bank_mask:0xa")
    for i in range(2):
        a(f"    v_add_f32 v{PR+2+i}, v{PR+i}, v{PR+i} quad_perm:[1,0,3,2] row_mask:0xf bank_mask:0xf")
    for i in range(2):
        a(f"    v_add_f32 v{d+i}, v{PR+2+i}, v{PR+2+i} quad_perm:[2,3,0,1] row_mask:0xf bank_mask:0xf")

def param_loads(a):
    a(f"""    s_lshl_b32 s{t1}, s{sX}, 6
    s_lshl_b32 s{t0}, s{sJ}, 1
    s_add_u32 s{t1}, s{t1}, s{t0}
    s_add_u32 s{t1}, s{t1}, s{sW}
    s_sub_u32 s{t1}, s{t1}, 2
    s_cmp_eq_u32 s{sW}, 1
    s_cselect_b32 s{t1}, s{sE}, s{t1}
    s_lshl_b32 s{t0}, s{t1}, 8
    v_lshl_add_u32 v6, v{vL}, 2, s{t0}
    s_lshl_b32 s{t0}, s{t1}, 1
    v_mov_b32 v7, s{t0}
    s_waitcnt lgkmcnt(0)
    global_load_ushort v{PAR}, v7, {sp('ldt')}
    global_load_dword v{PAR+1}, v6, {sp('lar')}
    global_load_dword v{PAR+2}, v6, {sp('aim')}
    global_load_dword v{PAR+3}, v6, {sp('cre')}
    global_load_dword v{PAR+4}, v6, {sp('cim')}""")

def zero_pads(a):
    a(f"""    v_mov_b32 v24, 0
    v_mov_b32 v25, 0
    v_mov_b32 v26, 0
    v_mov_b32 v27, 0
    v_lshrrev_b32 v6, 5, v{vL}
    v_mul_u32_u24 v6, {XSZ}, v6
    v_and_b32 v7, 31, v{vL}
    v_lshl_add_u32 v6, v7, 4, v6
    v_add_u32 v6, {X0}, v6
    v_lshrrev_b32 v7, 1, v{vL}
    v_mul_u32_u24 v7, {HOD}, v7
    v_and_b32 v8, 1, v{vL}
    v_lshl_add_u32 v7, v8, 4, v7
    v_add_u32 v7, {H0}, v7
    v_and_b32 v8, 7, v{vL}
    v_lshl_add_u32 v8, v8, 4, v{vMISC}
    v_cmp_le_u32 vcc, 24, v{vL}
    v_cndmask_b32 v7, v7, v8, vcc
    ds_write_b128 v6, v[24:27]
    ds_write_b128 v6, v[24:27] offset:{2*XSZ}
    ds_write_b128 v6, v[24:27] offset:{4*XSZ}
    ds_write_b128 v7, v[24:27]""")

def mf(d, x, y, c=None):
    cc = "0" if c == 0 else f"v[{d}:{d+3}]"
    return f"    v_mfma_f32_16x16x32_bf16 v[{d}:{d+3}], v[{x}:{x+3}], v[{y}:{y+3}], {cc}"

def kgen(a):
    DT = PAR
    ACC = [96, 100, 104]
    OP = 128
    prow = lambda r: (192 + r) if r < 41 else (108 + r - 42)
    def mfmas(first):
        for kk in range(4):
            a(f"    s_waitcnt lgkmcnt({4*(3-kk)})")
            b = OP + 16 * kk
            for t in range(3):
                a(mf(ACC[t], b + 4 * t, b + 12, 0 if (first and kk == 0) else None))
    a(f"""L_kgen:
    s_mov_b32 m0, s{sKG}
    v_mul_u32_u24 v13, {KROW}, v{vN}
    v_lshl_add_u32 v13, v{vG}, 4, v13
    v_add_u32 v13, s{sKG}, v13
    v_mov_b32 v14, 0x3f80
    ds_write_addtid_b32 v14 offset:{41*KROW}
    s_add_u32 s{t0}, s{sKG}, {KTAB}
    v_lshlrev_b32 v60, 7, v{vG}
    v_lshl_add_u32 v10, v{vN}, 3, v60
    v_add_u32 v11, 4, v10
    v_lshl_add_u32 v12, v{vN}, 2, v60
    v_add_u32 v61, 64, v12
    v_cmp_gt_u32 vcc, 32, v{vL}
    v_lshl_add_u32 v60, v{vN}, 1, v60
    v_add_u32 v60, s{t0}, v60
    v_cndmask_b32 v10, v12, v10, vcc
    v_cndmask_b32 v11, v61, v11, vcc
    v_add_u32 v10, s{t0}, v10
    v_add_u32 v11, s{t0}, v11
    v_lshrrev_b32 v61, 1, v{vG}
    v_lshlrev_b32 v61, 8, v61
    v_lshl_add_u32 v61, v{vN}, 4, v61
    v_and_b32 v14, 1, v{vG}
    v_lshl_add_u32 v61, v14, 3, v61
    v_add_u32 v61, s{sKH}, v61
    s_mov_b32 s{t0}, {f32(LOG2E_HI)}
    s_mov_b32 s{t1}, {f32(LOG2E_LO)}
    s_mov_b32 s{t2}, {f32(-LOG2E)}
    s_mov_b32 s{t3}, {f32(0.15915494309189535)}
    s_mov_b32 s{t4}, 0
    s_waitcnt vmcnt(0)""")
    st(a, 1)
    a(f"    v_lshlrev_b32 v{DT}, 16, v{DT}")
    exp_bf16(a, DT, DT, 28, 29, t0, t1)
    a(f"""    v_cvt_pk_bf16_f32 v{DT}, v{DT}, v{DT}
    v_and_b32 v{DT}, s{sHI}, v{DT}
""")
    W1, W8, W128, W2, W4, X, Y, T = [30 + 2 * i for i in range(8)]
    b = Asm()
    b(f"    v_lshlrev_b32 v14, 16, v{PAR+1}")
    exp_bf16(b, 14, 14, 28, 29, t0, t1)
    b(f"""    v_cvt_pk_bf16_f32 v14, v14, v14
    v_lshlrev_b32 v15, 16, v{PAR+2}
    v_and_b32 v14, s{sHI}, v14
    v_mul_f32 v15, v15, v{DT}
    v_mul_f32 v14, v14, v{DT}
    v_mul_f32 v15, s{t3}, v15
    v_mul_f32 v14, s{t2}, v14
    v_lshlrev_b32 v{X}, 16, v{PAR+3}
    v_lshlrev_b32 v{X+1}, 16, v{PAR+4}
    v_add_f32 v28, v{DT}, v{DT}
    v_mul_f32 v{X}, v{X}, v28
    v_mul_f32 v{X+1}, v{X+1}, v28""")
    for i, (W, p, sg) in enumerate(((W8, 8.0, -1), (W1, 1.0, 1), (W128, 128.0, 1))):
        t = 48 + 2 * i
        if p == 1.0:
            b(f"    v_exp_f32 v{t}, v14\n    v_fract_f32 v{t+1}, v15")
        else:
            b(f"""    v_mul_f32 v{t}, {f32(p)}, v14
    v_mul_f32 v{t+1}, {f32(sg*p)}, v15
    v_exp_f32 v{t}, v{t}
    v_fract_f32 v{t+1}, v{t+1}""")
        b(f"    v_cos_f32 v{W}, v{t+1}\n    v_sin_f32 v{W+1}, v{t+1}")
    tailp = [f"    v_pk_mul_f32 v[{W}:{W+1}], v[{W}:{W+1}], v[{48+2*i}:{49+2*i}] op_sel_hi:[1,0]" for i, W in enumerate((W8, W1, W128))]
    for l in b.lines: a(l)
    for i in range(1, 5): a(f"    v_lshrrev_b32 v{PAR+i}, 16, v{PAR+i}")
    a("    s_branch L_kg_gen\nL_kg_it:")
    ms = []
    for kk in range(4):
        o = OP + 16 * kk
        for t in range(3):
            ms.append((f"    s_waitcnt lgkmcnt({4*(3-kk)})\n" if t == 0 else "") + mf(ACC[t], o + 4 * t, o + 12, 0 if kk == 0 else None))
    lead = len(b.lines) - 24
    for k, l in enumerate(b.lines):
        if k >= lead and (k - lead) % 2 == 0: a(ms[(k - lead) // 2])
        a(l)
    a("    .p2align 3\nL_kg_gen:")
    for l in tailp: a(l)
    put = lambda row, src: a(f"    v_cvt_pk_bf16_f32 v{prow(row)}, v{src}, v{src+1}")
    cm = lambda d, x, w: cmul(a, d, x, w, T)
    put(42, W8)
    cm(Y, W8, W8); put(43, Y)
    for j in range(3, 16):
        cm(Y, Y, W8); put(41 + j, Y)
    cm(W2, W1, W1); cm(W4, W2, W2)
    rows = l_rows()
    idx = {ab: i for i, ab in enumerate(rows)}
    for a_ in range(17):
        if a_ > 0: cm(X, X, W128)
        put(idx[(a_, 0)], X)
        bs = [b for (aa, b) in rows if aa == a_ and b > 0]
        src = X
        for b in bs:
            cm(Y, src, {1: W1, 2: W2, 4: W4}[bs[0]]); src = Y
            put(idx[(a_, b)], Y)
    for r in list(range(42, 57)) + list(range(41)):
        a(f"    ds_write_addtid_b32 v{prow(r)} offset:{r*KROW}")
    for kk in range(4):
        b = OP + 16 * kk
        a(f"    ds_read_b128 v[{b+12}:{b+15}], v13 offset:{41*KROW + 64*kk}")
        for t in range(3):
            a(f"    ds_read_b128 v[{b+4*t}:{b+4*t+3}], v13 offset:{16*t*KROW + 64*kk}")
    a(f"""    s_add_u32 s{t4}, s{t4}, 1
    s_cmp_lt_u32 s{t4}, 2
    s_cbranch_scc1 L_kg_it""")
    mfmas(False)
    for i in range(6): a(f"    v_cvt_pk_bf16_f32 v{32+i}, v{96+2*i}, v{97+2*i}")
    a(f"""    ds_write_b64 v61, v[32:33] offset:32
    ds_write_b32 v10, v34 offset:512
    ds_write_b32 v11, v35 offset:512
    ds_write_b16 v60, v36 offset:1024
    ds_write_b16_d16_hi v60, v36 offset:1056
    ds_write_b16 v60, v37 offset:1088
    ds_write_b16_d16_hi v60, v37 offset:1120""")

def expand(a):
    a(f"""    s_add_u32 s{t0}, s{sKG}, {KTAB}
    v_lshl_add_u32 v14, v{vL}, 2, s{t0}
    v_lshl_add_u32 v9, v{vL}, 3, s{sKH}
    v_add_u32 v13, 1024, v14
    ds_read2_b32 v[40:41], v14 offset0:128 offset1:129
    ds_read2_b32 v[42:43], v14 offset0:192 offset1:193
    ds_read2_b32 v[44:45], v13 offset0:0 offset1:1
    ds_read_b64 v[46:47], v9 offset:32
    ds_read_b32 v39, v9 offset:28
    v_lshl_add_u32 v28, v{vL}, 4, s{sKH}
    v_lshl_add_u32 v29, v{vL}, 5, s{sKH}
    s_mov_b32 s{t0}, 0x01000100
    s_mov_b32 s{t1}, 0x03020302
    s_mov_b32 s{t2}, 0x05040302
    s_waitcnt lgkmcnt(0)
    v_perm_b32 v48, v40, v40, s{t0}
    v_perm_b32 v49, v41, v40, s{t2}
    v_mov_b32 v50, v48
    v_mov_b32 v51, v40
    v_perm_b32 v52, v42, v42, s{t0}
    v_mov_b32 v53, v42
    v_perm_b32 v54, v42, v42, s{t1}
    v_perm_b32 v55, v43, v43, s{t0}
    v_mov_b32 v56, v52
    v_mov_b32 v57, v52
    v_mov_b32 v58, v54
    v_perm_b32 v59, v43, v42, s{t2}
    v_perm_b32 v60, v44, v44, s{t0}
    v_perm_b32 v63, v44, v44, s{t1}
    v_perm_b32 v67, v45, v45, s{t0}
    v_mov_b32 v61, v60
    v_mov_b32 v62, v44
    v_mov_b32 v64, v63
    v_mov_b32 v65, v63
    v_mov_b32 v66, v67
    v_mov_b32 v68, v60
    v_mov_b32 v69, v60
    v_mov_b32 v70, v60
    v_mov_b32 v71, v63
    v_mov_b32 v72, v63
    v_mov_b32 v73, v63
    v_perm_b32 v74, v45, v44, s{t2}
    v_mov_b32 v75, v67
    v_alignbit_b32 v76, v46, v39, 16
    v_alignbit_b32 v77, v47, v46, 16""")

def expand_store(a):
    a(f"""    ds_write_b64 v9, v[48:49] offset:{32+512}
    ds_write_b64 v9, v[50:51] offset:{HOD+32+512}
    ds_write_b128 v28, v[52:55] offset:{32+1024}
    ds_write_b128 v28, v[56:59] offset:{HOD+32+1024}
    ds_write_b128 v29, v[60:63] offset:{32+2048}
    ds_write_b128 v29, v[64:67] offset:{32+2064}
    ds_write_b128 v29, v[68:71] offset:{HOD+32+2048}
    ds_write_b128 v29, v[72:75] offset:{HOD+32+2064}
    ds_write_b64 v9, v[76:77] offset:{HOD+32}
    s_mov_b32 exec_lo, 0
    s_mov_b32 exec_hi, 0x80000000
    ds_write_b16_d16_hi v9, v47 offset:{HOD+32+8}
    s_mov_b64 exec, -1""")

HR = 128
def hstore(a):
    a(f"""    v_lshl_add_u32 v9, v{vL}, 4, s{sH}
    v_mov_b32 v{HR+16}, 0""")
    for j in range(1, 4):
        a(f"    v_mov_b32 v{HR+16+j}, v{HR+4*j-1} wave_ror:1 row_mask:0xf bank_mask:0xf")
    for j in range(4):
        a(f"    v_mov_b32 v{HR+16+j}, v{HR+4*j+3} wave_shr:1 row_mask:0xf bank_mask:0xf")
    for j in range(4):
        r = HR + 4 * j; o = HR + 20 + 4 * j
        a(f"""    v_alignbit_b32 v{o}, v{r}, v{HR+16+j}, 16
    v_alignbit_b32 v{o+1}, v{r+1}, v{r}, 16
    v_alignbit_b32 v{o+2}, v{r+2}, v{r+1}, 16
    v_alignbit_b32 v{o+3}, v{r+3}, v{r+2}, 16""")
    for j in range(4):
        r = HR + 4 * j; o = HR + 20 + 4 * j
        a(f"""    ds_write_b128 v9, v[{r}:{r+3}] offset:{32 + 1024*j}
    ds_write_b128 v9, v[{o}:{o+3}] offset:{HOD + 32 + 1024*j}""")

AB = [16, 17, 18, 19]; BB = 20; vD = 21; ACC = 64; S = [128, 192]

def setup_addr(a):
    a(f"""    s_bfe_u32 s{t0}, s{sW}, 0x10001
    s_lshl_b32 s{t0}, s{t0}, 8
    s_add_u32 s{t1}, s{sH}, s{t0}
    s_sub_u32 s{t2}, s{sXB}, s{t0}
    v_lshrrev_b32 v6, 1, v{vN}
    v_lshlrev_b32 v7, 2, v{vG}
    v_sub_u32 v6, v6, v7
    v_add_u32 v6, 13, v6
    v_lshlrev_b32 v6, 2, v6
    v_and_b32 v7, 1, v{vN}
    v_xor_b32 v7, 1, v7
    v_mul_u32_u24 v7, {HOD}, v7
    v_add3_u32 v{AB[0]}, v6, v7, s{t1}
    v_add_u32 v{AB[1]}, 1024, v{AB[0]}
    v_add_u32 v{AB[2]}, 2048, v{AB[0]}
    v_add_u32 v{AB[3]}, 3072, v{AB[0]}
    v_lshl_add_u32 v6, v{vN}, 1, v{vG}
    v_lshl_add_u32 v6, v6, 4, s{t2}
    v_add_u32 v{BB}, {32 + 256}, v6
    v_lshrrev_b32 v6, 1, v{vN}
    v_and_b32 v6, 3, v6
    v_xor_b32 v6, v6, v{vG}
    v_lshl_add_u32 v6, v{vN}, 2, v6
    v_lshl_add_u32 v{vD}, v6, 4, s{sKG}
    v_mov_b32 v23, 1
    v_lshl_add_u32 v22, v1, 2, v{vMISC}""")

SETS = [128, 192, 64]
def a_reads(i, st_, n=8):
    l = []
    for al in range(n):
        o = (al & 1) * 128 + 16 * i
        r = SETS[st_] + 4 * al
        l.append(f"    ds_read2_b32 v[{r}:{r+1}], v{AB[al//2]} offset0:{o} offset1:{o+1}")
        l.append(f"    ds_read2_b32 v[{r+2}:{r+3}], v{AB[al//2]} offset0:{o+2} offset1:{o+3}")
    return l
def b_reads(i, st_, cv, n=8):
    return [f"    ds_read_b128 v[{SETS[st_]+32+4*be}:{SETS[st_]+32+4*be+3}], v{BB} offset:{2*XSZ*cv + 512*be + 64*(3-i)}" for be in range(n)]
def reads(i, st_, cv, n=8, rev=False):
    ar, br = a_reads(i, st_, n), b_reads(i, st_, cv, n)
    rd = []
    for k in range(n): rd += [br[n - 1 - k if rev else k], ar[2 * k], ar[2 * k + 1]]
    return rd

def check(off, val, lab, wait=None):
    b = Asm()
    if wait is not None: b(f"    s_waitcnt lgkmcnt({wait})")
    b(f"    v_readfirstlane_b32 s{t0}, v6\n    s_cmp_eq_u32 s{t0}, {val}\n    s_cbranch_scc1 {lab}_ok")
    spin(b, off, val, lab)
    b(f"    .p2align 3\n{lab}_ok:")
    return "\n".join(b.lines)

def conv_main(a):
    a(f"    s_mov_b32 m0, s{sKG}")
    flag = lambda off: f"    ds_read_b32 v6, v{vMISC} offset:{off}"
    PKD = 36
    acvt = lambda I, hh: f"    v_cvt_pk_bf16_f32 v{PKD+2*I+hh}, v{ACC+4*I+2*hh}, v{ACC+4*I+2*hh+1}"
    awr = lambda I, hh: f"    ds_write_addtid_b32 v{PKD+2*I+hh} offset:{8192 + 512*I + 256*hh}"
    BD = OPT.get('bd', 'x')
    for cv in range(2):
        acc = ACC + 32 * cv
        for i in range(4):
            s_ = i % 2
            gi = 4 * cv + i
            m = []
            for I in range(8):
                for al in range(I + 1):
                    m.append((mf(acc + 4 * I, S[s_] + 4 * al, S[s_] + 32 + 4 * (I - al), 0 if (i == 0 and al == 0) else None), I, al))
            fill = [[] for _ in range(36)]
            pre = [None] * 36
            if gi == 0:
                r0 = reads(0, 0, 0); lead = 12
                for l in r0[:lead]: a(l)
                stream = r0[lead:] + reads(1, 1, 0)
                for k, l in enumerate(stream): fill[min(k, 33)].append(l)
                for k, (_, I, al) in enumerate(m):
                    if al == 0:
                        issued = lead + sum(len(f) for f in fill[:k])
                        pre[k] = f"    s_waitcnt lgkmcnt({min(14, issued - 3*(I+1))})"
            else:
                a("    s_waitcnt lgkmcnt(0)")
            if gi < 5: st(a, 2 + gi, "c1")
            if gi >= 4: st(a, gi - 3, "c2")
            if i < 3 and gi > 0:
                rd = reads(i + 1, 1 - s_, cv)
                for k in range(24): fill[k + k // 3].append(rd[k])
                if gi == 4:
                    for k in range(8): fill[4 + k].insert(0, acvt(4 + k // 2, k % 2))
                    slots = [11, 15, 19, 23, 27, 31, 32, 33]
                    for k in range(8): fill[slots[k]].append(awr(4 + k // 2, k % 2))
                    fill[34].append(f"    ds_write_b32 v22, v23 offset:{M_AD}")
                if i == 2 and (cv == 0 or PRE): fill[31].append(flag(M_BCNT if cv == 0 else M_ERDY))
            elif i == 3:
                for r in AB: a(f"    v_add_u32 v{r}, {2*HSZ}, v{r}")
                if cv == 0:
                    a(check(M_BCNT, 3, "L_bw"))
                    for k, l in enumerate(a_reads(0, 0)): fill[k].append(l)
                    for k in range(8): fill[9 + k].insert(0, acvt(k // 2, k % 2))
                    for k in range(4): fill[16 + k].append(awr(k // 2, k % 2))
                    fill[20].append(flag(M_QRDY))
                    for k in range(4, 8): fill[17 + k].append(awr(k // 2, k % 2))
                    b = Asm(); st(b, 4)
                    fill[25].append(check(M_QRDY, 1, "L_qw", 4) + "\n" + "\n".join(b.lines))
                    for k, l in enumerate(b_reads(0, 0, 1)): fill[25 + k].append(l)
                else:
                    if PRE:
                        a(check(M_ERDY, 4, "L_ew"))
                        for k, l in enumerate(reads(0, 0, 2)[:PRE]): fill[k].append(l)
                    slots = {'x': [6, 11, 16, 21, 26, 31, 35], 'y': [24, 26, 28, 30, 32, 34, 35], 'z': [12, 16, 20, 24, 28, 32, 35]}[BD]
                    for I in range(7): fill[slots[I]].append(f"    ds_write_b128 v{vD}, v[{acc+4*I}:{acc+4*I+3}] offset:{1024*I}")
            a("    .p2align 3")
            for k, (x, I, al) in enumerate(m):
                if pre[k]: a(pre[k] + "\n    .p2align 3")
                a(x)
                for l in fill[k]: a(l)
            if gi == 7: a(f"    ds_write_b128 v{vD}, v[{acc+28}:{acc+31}] offset:7168")

LO, HI = 28, 32
def quarter(a):
    for I in range(1, 4):
        a(f"    s_cmp_eq_u32 s{t2}, {I}\n    s_cbranch_scc1 L_q{I}")
    for I in range(4):
        n = 8 - I
        a(f"    .p2align 3\nL_q{I}:")
        sets = [0, 1, 2, 0]
        def mm(g):
            b = SETS[sets[g]]
            l = [mf(HI, b + 4 * al, b + 32 + 4 * (7 - I - al), 0 if (g == 0 and al == 0) else None) for al in range(n)]
            l += [mf(LO, b + 4 * al, b + 32 + 4 * (I - al), 0 if (g == 0 and al == 0) else None) for al in range(I + 1)]
            return l
        for l in reads(0, 0, 2, n)[PRE:]: a(l)
        for g in range(1, 4):
            rd = reads(g, sets[g], 2, n, rev=(g == 3))
            lead = 0 if (g == 1 and PRE >= 3 * n) else min(12, len(rd) - 9)
            if g == 3: lead = len(rd) - 9 if len(rd) - 9 < 12 else 12
            for l in rd[:lead]: a(l)
            if lead: a(f"    s_waitcnt lgkmcnt({lead})\n    .p2align 3")
            ms = mm(g - 1)
            rest = rd[lead:]
            for k in range(max(len(ms), len(rest))):
                if k < len(ms): a(ms[k])
                if k < len(rest): a(rest[k])
        ms = mm(3)
        for k in range(n):
            w = 3 * (n - 1 - k)
            if w <= 12: a(f"    s_waitcnt lgkmcnt({w})")
            elif k == 0: a("    s_waitcnt lgkmcnt(12)")
            a(ms[k])
        for l in ms[n:]: a(l)
        if I < 3: a("    s_branch L_qend")
    a("L_qend:")

def unpack4(a, d, e0):
    a(f"""    v_and_b32 v{d}, s{sHI}, v{e0+1}
    v_lshlrev_b32 v{d+1}, 16, v{e0+1}
    v_and_b32 v{d+2}, s{sHI}, v{e0}
    v_lshlrev_b32 v{d+3}, 16, v{e0}""")

def x_dma(a, idx0):
    a(f"""    s_mul_i32 s{t0}, s{sJ}, {2*ROW}
    s_lshl_b32 s{t1}, s{sX}, 7
    s_add_u32 s{t0}, s{t0}, s{t1}""")
    for i in range(4):
        for c in range(2):
            a(f"""    s_mov_b32 m0, {X0 + (idx0+c)*XSZ + 512 + 1024*i - c*ROW}
    s_nop 0
    buffer_load_dwordx4 v12, s[{OUT}:{OUT+3}], s{t0} offen offset:{c*ROW} sc1 lds""")
        if i < 3: a(f"    s_add_u32 s{t0}, s{t0}, {512*ROW}")

def x_dma_addr(a):
    a(f"""    v_lshrrev_b32 v12, 3, v{vL}
    v_mul_u32_u24 v12, {64*ROW}, v12
    v_and_b32 v7, 7, v{vL}
    v_lshl_add_u32 v12, v7, 4, v12
    s_lshr_b32 s{t1}, s{sJ}, 4
    s_lshl_b32 s{t1}, s{t1}, 8
    v_lshl_add_u32 v10, v{vL}, 2, s{t1}""")

def receive(a, lab, n, vaddr, sbase, step, base=128, mid=None):
    def issue():
        a(f"    s_mov_b32 s{t0}, s{sbase}")
        for i in range(n):
            a(f"    buffer_load_dwordx4 v[{base+4*i}:{base+4*i+3}], v{vaddr}, s[{WS}:{WS+3}], s{t0} offen offset:{step*(i%2)} sc1")
            if i % 2 == 1 and i < n - 1: a(f"    s_add_u32 s{t0}, s{t0}, {2*step}")
    if mid:
        issue(); mid()
        a(f"    s_mov_b32 s{t1}, 0\n    s_branch {lab}_c")
    else:
        a(f"    s_mov_b32 s{t1}, 0")
    a(f"{lab}:")
    issue()
    a(f"{lab}_c:\n    s_add_u32 s{t1}, s{t1}, 1\n    s_waitcnt vmcnt(0)")
    for i in range(n):
        a(f"    v_xor_b32 v{base+3+4*i}, s{sT}, v{base+3+4*i}")
    for i in range(1, n):
        a(f"    v_or_b32 v{base+3}, v{base+3}, v{base+3+4*i}")
    a(f"""    v_cmp_ne_u32 vcc, 0, v{base+3}
    s_cbranch_vccz {lab}_ok
    s_sleep 4
    s_cmp_lt_u32 s{t1}, {HARD//16}
    s_cbranch_scc1 {lab}
{lab}_ok:""")

XA = 12288

def common(a):
    a(f"""    s_mov_b32 s{t1}, {NONCE_OFF}
    s_lshl_b32 s{t2}, s{sX}, 7
    s_lshl_b32 s{t3}, s{sJ}, 2
    s_add_u32 s{t2}, s{t2}, s{t3}
    s_lshl_b32 s{t3}, s{sE}, 1
    s_and_b32 s{t3}, s{t3}, -4
    s_cmp_ge_u32 s{sW}, 4
    s_cselect_b32 s{t2}, s{t2}, s{t3}
    s_load_dword s{sT}, {sp('ws')}, s{t1}
    s_load_dword s{sDA}, {sp('ssmD')}, s{t2}
    s_load_dword s{sDB}, {sp('dskip')}, s{t2}
    v_mov_b32 v{vMISC}, {MISC}
    s_getreg_b32 s{sTF}, hwreg(HW_REG_XCC_ID, 0, 4)
    s_mov_b32 s{sHI}, 0xffff0000
    s_lshl_b32 s{t0}, s{sW}, 2
    s_lshr_b32 s{t1}, 0x10401010, s{t0}
    s_and_b32 s{t1}, s{t1}, 7
    s_mul_i32 s{sH}, s{t1}, {HSZ}
    s_add_u32 s{sH}, s{sH}, {H0}
    s_mul_i32 s{sXB}, s{t1}, {XSZ}
    s_add_u32 s{sXB}, s{sXB}, {X0}
    s_lshr_b32 s{t1}, 0x32013210, s{t0}
    s_and_b32 s{t1}, s{t1}, 7
    s_mul_i32 s{sKG}, s{t1}, {KSZ}
    s_lshr_b32 s{t1}, 0x32053250, s{t0}
    s_and_b32 s{t1}, s{t1}, 7
    s_mul_i32 s{sKH}, s{t1}, {HSZ}
    s_add_u32 s{sKH}, s{sKH}, {H0}""")
    srd(a, WS, P['ws'], WS_SIZE); srd(a, OUT, P['out'], NBYTES)

def kernel(a):
    k = NAME + "_kernel"
    a(kstart(k))
    st(a, 0)
    a("    s_cmp_ge_u32 s2, 256\n    s_cbranch_scc1 L_end")
    load_kernargs(a)
    a(f"""    v_lshrrev_b32 v1, 6, v0
    v_and_b32 v{vL}, 63, v0
    v_readfirstlane_b32 s{sW}, v1
    s_getpc_b64 s[{t0}:{t1}]
L_pc:
    s_lshr_b32 s{sJ}, s2, 3
    s_and_b32 s{t4}, s{sJ}, {(1 << PFS) - 1}
    v_lshl_add_u32 v6, v0, {PFS}, s{t4}
    v_lshlrev_b32 v6, 7, v6
    v_cmp_gt_u32 vcc, L_end-L_pc, v6
    s_and_saveexec_b64 s[{t2}:{t3}], vcc
    s_cbranch_execz L_nopf
    global_load_dword v255, v6, s[{t0}:{t1}]
L_nopf:
    s_mov_b64 exec, -1
    v_and_b32 v{vN}, 15, v{vL}
    v_lshrrev_b32 v{vG}, 4, v{vL}
    s_and_b32 s{sX}, s2, 7
    s_lshl_b32 s{sE}, s{sX}, 3
    s_lshr_b32 s{t3}, s{sJ}, 2
    s_add_u32 s{sE}, s{sE}, s{t3}
    s_add_u32 s{sE}, s{sE}, 512
    s_lshl_b32 s{sFL}, s{sX}, 11
    s_add_u32 s{sFL}, s{sFL}, {FL_OFF}
    s_cmp_ge_u32 s{sW}, 4
    s_cbranch_scc1 L_a0
    s_cmp_eq_u32 s{sW}, 0
    s_cbranch_scc1 L_w0""")
    a("    s_setprio 3")
    param_loads(a)
    a(f"""    s_setprio 0
    s_branch L_com
L_w0:
    s_setprio {OPT.get('p0', 1)}
    s_mul_i32 s{t2}, s2, {8*ROW}
    v_and_b32 v9, 31, v{vL}
    v_lshlrev_b32 v9, 2, v9
    v_add_u32 v9, 1024, v9
    v_add_u32 v10, s{t2}, v9
    s_branch L_p1
L_a0:
    s_setprio 2
    s_lshl_b32 s{t2}, s{sJ}, 6
    s_and_b32 s{t3}, s{sW}, 2
    s_lshl_b32 s{t3}, s{t3}, 4
    s_add_u32 s{t2}, s{t2}, s{t3}
    s_mul_i32 s{t2}, s{t2}, {ROW}
    s_lshl_b32 s{t3}, s{sX}, 7
    s_and_b32 s{t4}, s{sW}, 1
    s_lshl_b32 s{t4}, s{t4}, 6
    s_add_u32 s{t3}, s{t3}, s{t4}
    v_lshl_add_u32 v9, v{vN}, 2, s{t3}
    v_mul_u32_u24 v10, {8*ROW}, v{vG}
    v_add3_u32 v10, v10, v9, s{t2}
L_p1:
    v_subrev_u32 v11, {3*ROW}, v10
    v_max_i32 v11, 0, v11
    v_add_u32 v10, 4032, v10""")
    p1_loads(a, 10, 11, 9)
    a(f"""    s_cmp_eq_u32 s{sW}, 0
    s_cbranch_scc1 L_com
    s_cmp_eq_u32 s{sW}, 4
    s_cbranch_scc1 L_touch
    s_lshl_b32 s{t1}, s{sX}, 6
    s_lshl_b32 s{t0}, s{sJ}, 1
    s_add_u32 s{t1}, s{t1}, s{t0}
    s_add_u32 s{t1}, s{t1}, s{sW}
    s_sub_u32 s{t1}, s{t1}, 6
    s_cmp_eq_u32 s{sW}, 5
    s_cselect_b32 s{t1}, s{sE}, s{t1}
    s_lshl_b32 s{t1}, s{t1}, 12
    v_lshl_add_u32 v6, v{vL}, 4, s{t1}""")
    for j in range(4):
        a(f"    global_load_dwordx4 v[{HR+4*j}:{HR+4*j+3}], v6, {sp('ssmk')} offset:{1024*j}")
    a(f"""    s_branch L_com
L_touch:
    s_mul_i32 s{t0}, s{sJ}, {64*ROW}
    s_add_u32 s{t0}, s{t0}, s{t3}
    v_and_b32 v7, 31, v{vL}
    v_mul_u32_u24 v6, {2*ROW}, v7
    v_add_u32 v6, s{t0}, v6
    v_lshl_add_u32 v7, v{vL}, 4, s{sFL}
    global_load_dword v{HR}, v6, {sp('out')} sc1
    global_load_dword v{HR+1}, v6, {sp('out')} offset:{ROW} sc1
    global_load_dword v{HR+2}, v7, {sp('ws')} sc1
    global_load_dword v{HR+3}, v7, {sp('ws')} offset:1024 sc1
L_com:""")
    st(a, 1, "pre")
    common(a)
    a(f"""    s_cmp_ge_u32 s{sW}, 4
    s_cbranch_scc1 L_aux""")
    setup_addr(a)
    a(f"""    s_cmp_eq_u32 s{sW}, 0
    s_cbranch_scc1 L_w0b""")
    kgen(a)
    st(a, 2)
    nonce_ready(a)
    a("    s_branch L_b1")
    a("L_w0b:")
    zero_pads(a)
    nonce_ready(a)
    st(a, 1)
    SG = 192
    seg = lambda h, gi: SG + 16 * h + 4 * gi
    for i in range(8): a(f"    v_mov_b32 v{SG+4*i+2}, 0\n    v_mov_b32 v{SG+4*i+3}, s{sT}")
    a(f"""    v_and_b32 v7, 7, v{vL}
    v_lshlrev_b32 v8, 7, v{vL}
    v_lshl_add_u32 v8, v7, 4, v8""")
    for i in range(8): a(f"    v_xor_b32 v{224+i}, {16*i}, v8")
    p1_kv(a, [[seg(h, 2), seg(h, 2) + 1, seg(h, 3), seg(h, 3) + 1] for h in range(2)], 0)
    a("    s_waitcnt vmcnt(0)")
    p1_q(a, [[seg(h, 0), seg(h, 0) + 1, seg(h, 1), seg(h, 1) + 1] for h in range(2)])
    p1_gate(a, 26)
    a(f"""    v_lshrrev_b32 v6, 2, v{vL}
    v_lshl_add_u32 v6, v6, 3, v{vMISC}
    ds_write_b64 v6, v[26:27] offset:{M_GE}
    s_mov_b32 exec_hi, 0""")
    for i in range(8): a(f"    ds_write_b128 v{224+i}, v[{SG+4*i}:{SG+4*i+3}] offset:{XA}")
    a(f"""    s_mov_b64 exec, -1
    v_lshrrev_b32 v9, 3, v{vL}
    v_xor_b32 v8, v9, v7
    v_lshlrev_b32 v8, 4, v8
    v_lshl_add_u32 v8, v9, 7, v8""")
    for i in range(4):
        a(f"    ds_read_b128 v[{224+4*i}:{227+4*i}], v8 offset:{XA + 1024*i}")
    a(f"""    v_lshlrev_b32 v9, 15, v9
    v_lshl_add_u32 v9, v7, 4, v9""")
    st(a, 2); st(a, 4, "pre")
    x_dma_addr(a)
    poll(a, "L_h1", 10, True, 0, "own", 0)
    st(a, 5, "pre")
    x_dma(a, 0)
    a(f"    s_lshl_b32 s{t4}, s{sJ}, 2\n    s_lshl_b32 s{t1}, s2, 7\n    s_waitcnt lgkmcnt(0)")
    for i in range(4):
        a(f"""    buffer_store_dwordx4 v[{224+4*i}:{227+4*i}], v9, s[{WS}:{WS+3}], s{t1} offen sc1
    s_add_u32 s{t1}, s{t1}, {8*32768}""")
    publish(a, t4, FR, None, 4)
    st(a, 6, "pre")
    a("    s_setprio 0\nL_b1:\n    s_waitcnt lgkmcnt(0)\n    s_barrier")
    st(a, 3); st(a, 1, "c1")
    conv_main(a)
    st(a, 5); st(a, 5, "c2")
    a(f"""    s_and_b32 s{t2}, s{sJ}, 3
    s_sub_u32 s{t1}, 7, s{t2}
    s_bitcmp1_b32 s{sW}, 0
    s_cselect_b32 s{t5}, s{t1}, s{t2}
    s_lshl_b32 s{t1}, s{t5}, 10
    s_add_u32 s{t1}, s{t1}, {GT_OFF + 4}
    s_and_b32 s{t0}, s{sW}, 2
    s_lshl_b32 s{t0}, s{t0}, 1
    s_sub_u32 s{t1}, s{t1}, s{t0}
    s_waitcnt lgkmcnt(0)
    s_barrier
    v_lshl_add_u32 v15, v{vN}, 2, v{vG}
    v_xor_b32 v14, 1, v15
    v_lshlrev_b32 v13, 4, v14
    buffer_load_dword v48, v13, s[{WS}:{WS+3}], s{t1} offen sc1""")
    quarter(a)
    st(a, 4, "tail")
    a(f"""    s_lshl_b32 s{t1}, s{sW}, 11
    s_add_u32 s{t1}, s{t1}, {SH0}
    v_lshl_add_u32 v10, v{vL}, 4, s{t1}
    s_lshl_b32 s{t1}, s{t5}, 9
    s_add_u32 s{t1}, s{t1}, {X0 + 4*XSZ + 512 + 4}
    s_sub_u32 s{t1}, s{t1}, s{t0}
    v_lshl_add_u32 v14, v14, 3, s{t1}
    ds_write_b128 v10, v[28:31]
    ds_write_b128 v10, v[32:35] offset:1024""")
    count(a, M_ECNT)
    a(f"""    ds_read_b32 v49, v14
    ds_read_b32 v50, v14 offset:{XSZ}
    s_and_b32 s{t1}, s{sW}, 1
    s_lshl_b32 s{t1}, s{t1}, 10
    s_lshl_b32 s{t2}, s{t0}, 1
    s_add_u32 s{t1}, s{t1}, s{t2}
    s_add_u32 s{t1}, s{t1}, {SH0}
    v_lshl_add_u32 v10, v{vL}, 4, s{t1}
    v_mul_u32_u24 v15, {4*ROW}, v15
    s_mul_i32 s{t5}, s{t5}, {256*ROW}
    s_mul_i32 s{t1}, s{t0}, {ROW//2}
    s_add_u32 s{t5}, s{t5}, s{t1}
    s_lshl_b32 s{t1}, s{sE}, 1
    s_add_u32 s{t5}, s{t5}, s{t1}
    s_and_b32 s{t1}, s{sE}, 1
    s_lshl_b32 s{t1}, s{t1}, 4
    s_lshr_b32 s{sDA}, s{sDA}, s{t1}
    s_lshr_b32 s{sDB}, s{sDB}, s{t1}
    s_lshl_b32 s{sDA}, s{sDA}, 16
    s_lshl_b32 s{sDB}, s{sDB}, 16""")
    spin(a, M_ECNT, 4, "L_ecw")
    for w in range(4):
        a(f"    ds_read_b64 v[{40+2*w}:{41+2*w}], v10 offset:{2048*w}")
    a(f"""    v_and_b32 v52, s{sHI}, v49
    v_lshlrev_b32 v53, 16, v49
    v_and_b32 v54, s{sHI}, v50
    v_lshlrev_b32 v55, 16, v50
    v_mul_f32 v52, s{sDA}, v52
    v_mul_f32 v53, s{sDA}, v53
    s_waitcnt vmcnt(0)
    v_and_b32 v56, s{sHI}, v48
    v_lshlrev_b32 v57, 16, v48
    s_waitcnt lgkmcnt(0)
    v_pk_add_f32 v[40:41], v[40:41], v[44:45]
    v_pk_add_f32 v[42:43], v[42:43], v[46:47]
    v_pk_add_f32 v[40:41], v[40:41], v[52:53]
    v_fma_f32 v42, v54, s{sDB}, v42
    v_fma_f32 v43, v55, s{sDB}, v43
    v_pk_fma_f32 v[40:41], v[40:41], v[54:55], v[42:43] neg_lo:[0,0,1] neg_hi:[0,0,1]
    v_pk_fma_f32 v[40:41], v[40:41], v[56:57], v[42:43]
    v_cvt_pk_bf16_f32 v40, v40, v41
    buffer_store_short v40, v15, s[{OUT}:{OUT+3}], s{t5} offen
    buffer_store_short_d16_hi v40, v15, s[{OUT}:{OUT+3}], s{t5} offen offset:{ROW}""")
    st(a, 6); st(a, 5, "tail")
    if STAMPS:
        a("    s_waitcnt vmcnt(0)\n    s_branch L_stamps")
    a("    s_endpgm")
    a(f"""L_fin:
    s_mul_i32 s{t5}, s{sJ}, {64*ROW}
    s_lshl_b32 s{t2}, s{sX}, 7
    s_add_u32 s{t5}, s{t5}, s{t2}
    v_lshrrev_b32 v14, 3, v{vL}
    v_and_b32 v13, 7, v{vL}
    v_mul_u32_u24 v12, {ROW}, v14
    v_lshl_add_u32 v12, v13, 4, v12
    s_cmp_lg_u32 s{sW}, 5
    s_cbranch_scc1 L_t2
    s_lshr_b32 s{t1}, s{sJ}, 3
    s_lshl_b32 s{t1}, s{t1}, 7
    s_add_u32 s{t1}, s{t1}, {F2}
    v_and_b32 v11, 31, v{vL}
    v_lshl_add_u32 v10, v11, 2, s{t1}""")
    poll(a, "L_h3", 10, False, 3, M_CNT2, 4)
    a(f"    s_mov_b32 s{t0}, s{t5}")
    for j in range(8):
        a(f"""    s_mov_b32 m0, {T2 + 1024*j}
    buffer_load_dwordx4 v12, s[{OUT}:{OUT+3}], s{t0} offen sc1 lds""")
        if j < 7: a(f"    s_add_u32 s{t0}, s{t0}, {8*ROW}")
    a("    s_waitcnt vmcnt(0)")
    signal(a, M_TRDY)
    a(f"""L_t2:
    s_and_b32 s{t1}, s{sW}, 3
    s_mul_i32 s{t0}, s{t1}, {16*ROW}
    s_add_u32 s{t5}, s{t5}, s{t0}
    s_add_u32 s{t4}, s{t5}, {8*ROW}
    s_lshl_b32 s{t0}, s{t1}, 2
    v_lshrrev_b32 v15, 2, v14
    v_add_u32 v15, s{t0}, v15
    v_xor_b32 v15, v15, v13
    v_lshlrev_b32 v15, 4, v15
    v_and_b32 v14, 3, v14
    v_lshl_add_u32 v15, v14, 2, v15
    v_lshl_add_u32 v15, v13, 10, v15
    v_xor_b32 v16, 32, v15
    v_add_u32 v15, {T2}, v15
    v_add_u32 v16, {T2}, v16""")
    spin(a, M_TRDY, 1, "L_tw")
    st(a, 6); st(a, 5, "tail")
    a(f"""    ds_read2st64_b32 v[32:33], v15 offset0:0 offset1:1
    ds_read2st64_b32 v[34:35], v15 offset0:2 offset1:3
    ds_read2st64_b32 v[36:37], v16 offset0:0 offset1:1
    ds_read2st64_b32 v[38:39], v16 offset0:2 offset1:3
    s_waitcnt lgkmcnt(2)
    buffer_store_dwordx4 v[32:35], v12, s[{OUT}:{OUT+3}], s{t5} offen
    s_waitcnt lgkmcnt(0)
    buffer_store_dwordx4 v[36:39], v12, s[{OUT}:{OUT+3}], s{t4} offen""")
    if STAMPS:
        a("    s_waitcnt vmcnt(0)\nL_stamps:")
        st(a, 7)
        a(f"    s_mul_i32 s75, s2, 8\n    s_add_u32 s75, s75, s{sW}\n    v_and_b32 v0, 63, v0")
        stamps_out(a, 8, P['ws'], wg="s75", vt=120)
    a("    s_endpgm")
    a(f"""L_aux:
    s_setprio 2
    s_and_b32 s{t0}, s{sW}, 1
    s_bfe_u32 s{t1}, s{sW}, 0x10001
    s_lshl_b32 s{t2}, s{sW}, 11
    s_add_u32 s{t2}, s{t2}, {SH0 - 4*2048}
    v_lshrrev_b32 v6, 1, v{vN}
    v_and_b32 v6, 3, v6
    v_xor_b32 v6, v6, v{vG}
    v_lshl_add_u32 v6, v{vN}, 2, v6
    v_lshl_add_u32 v13, v6, 4, s{t2}
    v_lshrrev_b32 v6, 3, v{vL}
    v_and_b32 v6, 3, v6
    v_xor_b32 v6, v6, v{vL}
    v_lshl_add_u32 v14, v6, 4, s{t2}
    s_lshl_b32 s{t2}, s{sJ}, 6
    s_lshl_b32 s{t3}, s{t0}, 5
    s_add_u32 s{t2}, s{t2}, s{t3}
    s_mul_i32 s{t2}, s{t2}, {ROW}
    s_lshl_b32 s{t3}, s{sX}, 7
    s_add_u32 s{t2}, s{t2}, s{t3}
    s_lshl_b32 s{t3}, s{t1}, 6
    s_add_u32 s{t2}, s{t2}, s{t3}
    v_lshrrev_b32 v6, 2, v{vL}
    v_mul_u32_u24 v6, {2*ROW}, v6
    v_and_b32 v7, 3, v{vL}
    v_lshl_add_u32 v6, v7, 4, v6
    v_add_u32 v15, s{t2}, v6
    s_lshl_b32 s{t2}, s{sJ}, 13
    s_lshl_b32 s{t3}, s{t1}, 12
    s_add_u32 s{t2}, s{t2}, s{t3}
    s_lshl_b32 s{t3}, s{sX}, 7
    s_add_u32 s{t2}, s{t2}, s{t3}
    s_lshl_b32 s{t3}, s{t0}, 6
    s_add_u32 s{t2}, s{t2}, s{t3}
    s_add_u32 s{t2}, s{t2}, {GP_OFF}
    v_lshlrev_b32 v16, 10, v{vG}
    v_lshl_add_u32 v16, v{vN}, 2, v16
    v_add_u32 v16, s{t2}, v16
    s_lshl_b32 s{t4}, s{t0}, 8
    s_lshl_b32 s{t3}, s{sJ}, 3
    s_add_u32 s{t4}, s{t4}, s{t3}
    s_lshl_b32 s{t3}, s{t1}, 2
    s_add_u32 s{t4}, s{t4}, s{t3}""")
    g4 = lambda i: [GR + 4 * i + m for m in range(4)]
    st(a, 1)
    p1_kv(a, [g4(0), g4(1)], 4)
    a(f"""    ds_write_b128 v13, v[{GR}:{GR+3}]
    ds_write_b128 v13, v[{GR+4}:{GR+7}] offset:1024
    ds_read_b128 v[116:119], v14
    ds_read_b128 v[120:123], v14 offset:1024""")
    nonce_ready(a)
    a(f"""    buffer_store_dwordx4 v[116:119], v15, s[{OUT}:{OUT+3}], 0 offen
    buffer_store_dwordx4 v[120:123], v15, s[{OUT}:{OUT+3}], 0 offen offset:{ROW}
    v_mov_b32 v26, 0
    v_mov_b32 v27, s{sT}""")
    st(a, 4, "pre")
    a("    s_waitcnt vmcnt(6)")
    st(a, 5, "pre")
    p1_gate(a, 24)
    a(f"""    s_mov_b32 exec_lo, 0x11111111
    s_mov_b32 exec_hi, 0x11111111
    buffer_store_dwordx4 v[24:27], v16, s[{WS}:{WS+3}], 0 offen sc1
    s_mov_b64 exec, -1""")
    publish(a, t4, F1, None, 1)
    st(a, 2); st(a, 6, "pre")
    prio(a, "d", 0)
    a(f"    s_cmp_eq_u32 s{sW}, 4\n    s_cbranch_scc1 L_nohs")
    hstore(a)
    a("L_nohs:")
    p1_q(a, [g4(0), g4(1)])
    a(f"""    ds_write_b128 v13, v[{GR}:{GR+3}]
    ds_write_b128 v13, v[{GR+4}:{GR+7}] offset:1024
    ds_read_b128 v[116:119], v14
    ds_read_b128 v[120:123], v14 offset:1024""")
    x_dma_addr(a)
    a(f"""    v_and_b32 v11, 31, v{vL}
    v_lshlrev_b32 v11, 2, v11
    v_add_u32 v11, {FR}, v11
    v_add_u32 v10, {FQ}, v10
    s_setprio 2
    s_waitcnt lgkmcnt(0)
    s_barrier
    s_cmp_eq_u32 s{sW}, 5
    s_cbranch_scc1 L_rpoll
    s_lshl_b32 s{R2}, s2, 10
    s_add_u32 s{R2}, s{R2}, {GP_OFF}
    v_lshlrev_b32 v10, 4, v{vL}
    s_cmp_lg_u32 s{sW}, 4
    s_cbranch_scc1 L_exp""")
    def mid4():
        a(f"""    v_and_b32 v11, 3, v{vL}
    v_lshl_add_u32 v12, v11, 3, v{vMISC}
    ds_read_b64 v[80:81], v12 offset:{M_GE}
    ds_read_b64 v[82:83], v12 offset:{M_GE + 32}
L_exp:""")
        expand(a)
        if XP == 'early':
            expand_store(a); count(a, M_BCNT); st(a, 2, "aux")
        a(f"    s_cmp_lg_u32 s{sW}, 4\n    s_cbranch_scc1 L_rwait")
    receive(a, "L_rp", 1, 10, R2, 0, 128, mid4)
    a("    s_branch L_rwait\nL_rpoll:")
    poll(a, "L_hr", 11, False, 1, None, 0)
    signal(a, M_ROK)
    a("    s_branch L_rok")
    spin(a, M_ROK, 1, "L_rwait", 1)
    a(f"""L_rok:
    buffer_store_dwordx4 v[116:119], v15, s[{OUT}:{OUT+3}], 0 offen
    buffer_store_dwordx4 v[120:123], v15, s[{OUT}:{OUT+3}], 0 offen offset:{ROW}""")
    publish(a, t4, FQ, M_CNTQ)
    st(a, 1, "aux")
    a(f"""    s_cmp_eq_u32 s{sW}, 5
    s_cbranch_scc1 L_recv""")
    if XP != 'early':
        prio(a, "e", 0)
        expand_store(a); count(a, M_BCNT); st(a, 2, "aux")
        prio(a, "e", 2)
    a(f"""    s_cmp_eq_u32 s{sW}, 4
    s_cbranch_scc0 L_pre""")
    a(f"""L_gate:""")
    for i in range(2): a(f"    v_add_f32 v{132+i}, v{128+i}, v{128+i} row_ror:4 row_mask:0xf bank_mask:0xf")
    for i in range(2): a(f"    v_add_f32 v{128+i}, v{132+i}, v{132+i} row_ror:8 row_mask:0xf bank_mask:0xf")
    a(f"""    v_mov_b32 v132, v128
    v_mov_b32 v133, v129
    v_permlane16_swap_b32 v128, v132
    v_permlane16_swap_b32 v129, v133
    v_add_f32 v128, v128, v132
    v_add_f32 v129, v129, v133
    v_mov_b32 v132, v128
    v_mov_b32 v133, v129
    v_permlane32_swap_b32 v128, v132
    v_permlane32_swap_b32 v129, v133
    v_add_f32 v28, v80, v82
    v_add_f32 v29, v81, v83
    v_add_f32 v128, v128, v132
    v_add_f32 v129, v129, v133
    v_add_f32 v128, v128, v28
    v_add_f32 v129, v129, v29
    v_mul_f32 v128, {f32(-LOG2E)}, v128
    v_mul_f32 v129, {f32(-LOG2E)}, v129
    v_exp_f32 v128, v128
    v_exp_f32 v129, v129
    v_add_f32 v128, 1.0, v128
    v_add_f32 v129, 1.0, v129
    v_rcp_f32 v128, v128
    v_rcp_f32 v129, v129
    v_mov_b32 v26, 0
    v_mov_b32 v27, s{sT}
    v_cvt_pk_bf16_f32 v128, v129, v128
    s_lshl_b32 s{t2}, s2, 5
    s_add_u32 s{t2}, s{t2}, {GT_OFF}
    v_mov_b32 v24, v128 quad_perm:[3,1,3,1] row_mask:0xf bank_mask:0xf
    v_mov_b32 v25, v128 quad_perm:[2,0,2,0] row_mask:0xf bank_mask:0xf
""")
    spin(a, M_QI, 1, "L_qi", 1)
    a(f"""    s_mov_b64 exec, 3
    buffer_store_dwordx4 v[24:27], v10, s[{WS}:{WS+3}], s{t2} offen sc1
    s_mov_b64 exec, -1""")
    a("    s_branch L_pre")
    a("L_recv:")
    poll(a, "L_hq", 10, True, 2, M_CNTQ, 4)
    x_dma(a, 2)
    signal(a, M_QI)
    a("    s_waitcnt vmcnt(0)")
    signal(a, M_QRDY)
    st(a, 2, "aux")
    a("L_pre:")
    prio(a, "c", 0)
    a(f"""    ; addresses of the mix: v16 / v17,v21..v23 partial sums, v18 signals, v19 gate granules, v20 scratch position in d_out
    s_lshr_b32 s{t0}, s{sJ}, 2
    v_xor_b32 v6, s{t0}, v{vL}
    v_lshrrev_b32 v7, 2, v6
    v_and_b32 v8, 3, v6
    v_lshl_add_u32 v7, v8, 4, v7
    s_and_b32 s{t5}, s{sW}, 3
    s_lshl_b32 s{t1}, s{t5}, 11
    v_lshrrev_b32 v8, 3, v6
    v_and_b32 v8, 3, v8
    v_xor_b32 v8, v8, v6
    v_lshl_add_u32 v16, v8, 4, s{t1}
    s_lshl_b32 s{t1}, s{t5}, 10
    v_lshl_add_u32 v17, v7, 2, s{t1}
    v_add_u32 v21, {KSZ + 8192}, v17
    v_add_u32 v22, {2*KSZ + 8192}, v17
    v_add_u32 v23, {3*KSZ + 8192}, v17
    v_add_u32 v17, 8192, v17
    v_xor_b32 v6, 1, v6
    s_add_u32 s{t1}, s{t1}, {X0 + 512}
    v_lshl_add_u32 v18, v6, 3, s{t1}
    v_lshlrev_b32 v19, 4, v6
    s_lshl_b32 s{t1}, s{t5}, 9
    s_lshl_b32 s{t2}, s{sJ}, 1
    s_add_u32 s{t1}, s{t1}, s{t2}
    s_mul_i32 s{t1}, s{t1}, {ROW}
    s_lshl_b32 s{t2}, s{sX}, 7
    s_add_u32 s{t1}, s{t1}, s{t2}
    v_lshlrev_b32 v20, 6, v{vG}
    v_bfe_u32 v7, v{vL}, 3, 1
    v_add_u32 v20, v20, v7
    v_mul_u32_u24 v20, {ROW}, v20
    v_and_b32 v7, 7, v{vL}
    v_lshl_add_u32 v20, v7, 4, v20
    v_add_u32 v20, s{t1}, v20
    s_lshl_b32 s{R1}, s{sDA}, 16
    s_and_b32 s{R1+1}, s{sDA}, s{sHI}
    s_lshl_b32 s{R1+2}, s{sDB}, 16
    s_and_b32 s{R1+3}, s{sDB}, s{sHI}""")
    a(f"""    s_sub_u32 s{t0}, s{sE}, 512
    s_lshr_b32 s{t1}, s{t0}, 1
    s_lshl_b32 s{t1}, s{t1}, 15
    s_and_b32 s{t0}, s{t0}, 1
    s_lshl_b32 s{t0}, s{t0}, 6
    s_add_u32 s{t4}, s{t0}, s{t1}
    s_lshl_b32 s{t0}, s{t5}, 13
    s_add_u32 s{t4}, s{t4}, s{t0}
    s_lshl_b32 s{t0}, s{t5}, 10
    v_lshrrev_b32 v7, 2, v{vL}
    v_and_b32 v8, 3, v{vL}
    v_lshlrev_b32 v10, 7, v7
    v_lshl_add_u32 v10, v8, 4, v10
    v_lshrrev_b32 v11, 1, v8
    v_mul_u32_u24 v11, {XSZ}, v11
    v_sub_u32 v11, {X0 + 5*XSZ + 512}, v11
    v_lshl_add_u32 v11, v7, 4, v11
    v_and_b32 v8, 1, v8
    v_lshl_add_u32 v11, v8, 3, v11
    v_add_u32 v11, s{t0}, v11""")
    spin(a, M_QI, 1, "L_xw", 2)
    receive(a, "L_rx", 4, 10, t4, 2048)
    a(f"    s_cmp_lg_u32 s{sW}, 4\n    s_cbranch_scc1 L_ngd")
    signal(a, M_GDONE)
    a("L_ngd:")
    for i in range(4):
        a(f"    ds_write_b64 v11, v[{128+4*i}:{129+4*i}] offset:{256*i}")
    count(a, M_ERDY)
    st(a, 3, "aux")
    spin(a, M_GDONE, 1, "L_gwait", 2)
    PS = lambda t, c: 64 + 24 * t + 12 * c
    GM = lambda t: 112 + 4 * t
    DA = [17, 21, 22, 23]
    a(f"""    s_lshl_b32 s{t4}, s{t5}, 11
    s_add_u32 s{t4}, s{t4}, {GT_OFF}""")
    def mid():
        spin(a, M_QRDY, 1, "L_qrw")
        for t in range(2):
            for x in range(4):
                a(f"    ds_read_b64 v[{168+16*t+2*x}:{169+16*t+2*x}], v18 offset:{x*XSZ + 512*t}")
        for t in range(2):
            a(f"    s_waitcnt lgkmcnt({4*(1-t)})")
            for c in range(2):
                p = PS(t, c)
                unpack4(a, p, 168 + 16 * t + 2 * c); unpack4(a, p + 8, 172 + 16 * t + 2 * c)
                a(f"    v_mov_b32 v7, s{R1+2+c}")
                for i in range(4): a(f"    v_fma_f32 v{p+i}, v{p+i}, s{R1+c}, -v7")
                for i in range(4): a(f"    v_mul_f32 v{p+4+i}, v7, v{p+8+i}")
        a(f"""L_aw:
    ds_read_b128 v[24:27], v{vMISC} offset:{M_AD}
    s_waitcnt lgkmcnt(0)
    v_and_b32 v24, v24, v25
    v_and_b32 v26, v26, v27
    v_and_b32 v24, v24, v26
    v_readfirstlane_b32 s{t0}, v24
    s_cmp_eq_u32 s{t0}, 1
    s_cbranch_scc1 L_aok
    s_sleep 2
    s_branch L_aw
L_aok:""")
        st(a, 3); st(a, 4, "aux")
        for t in range(2):
            for w in range(4):
                a(f"    ds_read2st64_b32 v[{160+16*t+2*w}:{161+16*t+2*w}], v{DA[w]} offset0:{2*t} offset1:{2*t+1}")
        for t in range(2):
            a(f"    s_waitcnt lgkmcnt({4*(1-t)})")
            for w in range(4):
                r = 160 + 16 * t + 2 * w; p = PS(t, w & 1)
                a(f"""    v_lshlrev_b32 v24, 16, v{r}
    v_and_b32 v25, s{sHI}, v{r}
    v_lshlrev_b32 v26, 16, v{r+1}
    v_and_b32 v27, s{sHI}, v{r+1}""")
                for i in range(4): a(f"    v_add_f32 v{p+i}, v{p+i}, v{24+i}")
            for c in range(2):
                for i in range(4): a(f"    v_mul_f32 v{PS(t,c)+i}, v{PS(t,c)+i}, v{PS(t,c)+8+i}")
    receive(a, "L_rg", 2, 19, t4, 1024, 128, mid)
    st(a, 5, "aux")
    for t in range(2):
        unpack4(a, GM(t), 128 + 4 * t)
        for c in range(2):
            for i in range(4):
                a(f"    v_fma_f32 v{PS(t,c)+i}, v{PS(t,c)+i}, v{GM(t)+i}, v{PS(t,c)+4+i}")
        for i in range(4): a(f"    v_sub_f32 v{GM(t)+i}, 1.0, v{GM(t)+i}")
    a(f"""    s_lshl_b32 s{t4}, s{t5}, 7
    s_lshl_b32 s{t2}, s{sJ}, 2
    s_add_u32 s{t4}, s{t4}, s{t2}
    s_mov_b32 s{t3}, {256*ROW}""")
    st(a, 4); st(a, 6, "aux")
    a("    s_setprio 2\n    s_waitcnt lgkmcnt(0)\n    s_barrier")
    st(a, 3, "tail")
    for t in range(2):
        for w in range(4):
            a(f"    ds_read_b128 v[{128+16*t+4*w}:{131+16*t+4*w}], v16 offset:{w*KSZ + 1024*t}")
    for t in range(2):
        a(f"    s_waitcnt lgkmcnt({4*(1-t)})")
        b = 128 + 16 * t
        for c in range(2):
            for i in range(4): a(f"    v_add_f32 v{b+4*c+i}, v{b+4*c+i}, v{b+8+4*c+i}")
        for c in range(2):
            for i in range(4): a(f"    v_fmac_f32 v{PS(t,c)+i}, v{b+4*c+i}, v{GM(t)+i}")
        for i in range(4): a(f"    v_cvt_pk_bf16_f32 v{32+4*t+i}, v{PS(t,0)+i}, v{PS(t,1)+i}")
        a(f"    buffer_store_dwordx4 v[{32+4*t}:{35+4*t}], v20, s[{OUT}:{OUT+3}], {'s%d' % t3 if t else '0'} offen")
    publish(a, t4, F2, M_CNT2)
    st(a, 5); st(a, 4, "tail")
    a(f"""    s_lshl_b32 s{t0}, s2, 3
    s_add_u32 s{t0}, s{t0}, s{sW}
    s_cmp_lg_u32 s{t0}, 4
    s_cbranch_scc1 L_fin
    v_mov_b32 v6, s{sT}
    v_mov_b32 v7, {NONCE_OFF}
    buffer_store_dword v6, v7, s[{WS}:{WS+3}], 0 offen
    s_branch L_fin
L_end:
    s_endpgm""")

def main(path):
    a = Asm(); b = Asm()
    kernel(b)
    lines, n = hz.fix(b.lines)
    k = NAME + "_kernel"
    a(header([(k, 256, 512, LDS_SIZE)])); a("\n".join(lines))
    a(rodata()); a(kdesc(k, 256, sgpr=100))
    open(path, "w").write(a.text())
    print("nops inserted:", n, "LDS", LDS_SIZE)

if __name__ == "__main__":
    main(sys.argv[1])
```
